```python
import torch

def _softmax(x, axis=-1):
    return torch.softmax(x, dim=axis)
def _gelu(x):
    return torch.nn.functional.gelu(x, approximate="tanh")
def _silu(x):
    return torch.nn.functional.silu(x)
def _sigmoid(x):
    return torch.sigmoid(x)
def _layernorm(x, axis=-1, eps=1e-5):
    m = x.mean(dim=axis, keepdim=True)
    v = x.var(dim=axis, keepdim=True, unbiased=False)
    return (x - m) / torch.sqrt(v + eps)
def _scatter_add(tgt, idx, src, axis=0):
    return tgt.clone().index_add_(axis, idx, src)
def _segment_sum(src, seg, n):
    out = torch.zeros((n,) + src.shape[1:], dtype=src.dtype)
    return out.index_add_(0, seg, src)
def _pad(x, pw):
    flat = tuple(v for pair in reversed(pw) for v in pair)
    return torch.nn.functional.pad(x, flat)

kernel_name = 'sequential_preLN__mha_block_cached__moe_arch_mod__decode'

def setup_inputs():

    _w = (lambda a: (lambda t: t.to(torch.bfloat16) if t.is_floating_point() else t)(torch.as_tensor(a)))
    def _A_setup():
        B, Sq, D = 4, 1, 640
        H, Sk, Dh = 32, 8192, 192
        return {
            "x": _w((lambda *s: torch.randn(*s, dtype=torch.bfloat16) * 0.05)(B, Sq, D)),
            "k_cache": _w((lambda *s: torch.randn(*s, dtype=torch.bfloat16) * 3.2)(B, H, Sk, Dh)),
            "v_cache": _w((lambda *s: torch.randn(*s, dtype=torch.bfloat16) * 0.4)(B, H, Sk, Dh)),
            "wq": _w((lambda *s: torch.randn(*s, dtype=torch.bfloat16) * 3.2)(D, H * Dh) * (D ** -0.5)),
            "wo": _w((lambda *s: torch.randn(*s, dtype=torch.bfloat16) * 0.4)(H * Dh, D) * ((H * Dh) ** -0.5)),
        }
    _A_in = _A_setup()

    def _B_setup():
        B, S, D, F, C = 4, 1, 640, 1536, 1
        return {
            "x": _w((lambda *s: torch.randn(*s, dtype=torch.bfloat16) * 0.05)(B, S, D)),
            "w_r": _w((lambda *s: torch.randn(*s, dtype=torch.bfloat16) * 0.05)(D)),
            "w_gate": _w((lambda *s: torch.randn(*s, dtype=torch.bfloat16) * 0.05)(D, F)),
            "w_up": _w((lambda *s: torch.randn(*s, dtype=torch.bfloat16) * 0.05)(D, F)),
            "w_down": _w((lambda *s: torch.randn(*s, dtype=torch.bfloat16) * 0.05)(F, D)),
        }
    _B_in = _B_setup()

    return {
        "A_x": _A_in["x"],
        "A_k_cache": _A_in["k_cache"],
        "A_v_cache": _A_in["v_cache"],
        "A_wq": _A_in["wq"],
        "A_wo": _A_in["wo"],
        "B_x": _B_in["x"],
        "B_w_r": _B_in["w_r"],
        "B_w_gate": _B_in["w_gate"],
        "B_w_up": _B_in["w_up"],
        "B_w_down": _B_in["w_down"],
    }

def reference(A_x, A_k_cache, A_v_cache, A_wq, A_wo, B_x, B_w_r, B_w_gate, B_w_up, B_w_down):
    def _A_ref(x, k_cache, v_cache, wq, wo):
        B, Sq, D = x.shape
        H, Dh = 32, 192
        q = (lambda x, *d: x.permute(*d))((x @ wq).reshape(B, Sq, H, Dh), 0, 2, 1, 3)
        scores = torch.einsum("bhqd,bhkd->bhqk", q, k_cache) * (Dh ** -0.5)
        p = _softmax(scores, axis=-1)
        o = torch.einsum("bhqk,bhkd->bhqd", p, v_cache)
        return (lambda x, *d: x.permute(*d))(o, 0, 2, 1, 3).reshape(B, Sq, H * Dh) @ wo

    def _B_ref(x, w_r, w_gate, w_up, w_down):
        B, S, D = x.shape
        C = 1
        r = x @ w_r
        idx = torch.argsort(-r, axis=-1)[:, :C]
        idx_e = (lambda x, n, axis: torch.repeat_interleave(x, n, dim=axis))(idx.reshape(B, C, 1), D, axis=2)
        x_sel = (lambda x, i, axis: torch.take_along_dim(x, i, dim=axis))(x, idx_e, axis=1)
        g = _silu(x_sel @ w_gate)
        u = x_sel @ w_up
        y = (g * u) @ w_down
        r_sel = _sigmoid((lambda x, i, axis: torch.take_along_dim(x, i, dim=axis))(r, idx, axis=1))
        y = y * r_sel.reshape(B, C, 1)
        b_off = (torch.arange(B) * S).reshape(B, 1)
        flat_idx = (idx + b_off).reshape(B * C)
        zero = (x * 0.0).reshape(B * S, D)
        upd = _scatter_add(zero, flat_idx, y.reshape(B * C, D), axis=0)
        return x + upd.reshape(B, S, D)

    x = A_x
    h = x + _A_ref(_layernorm(x, axis=-1), A_k_cache, A_v_cache, A_wq, A_wo)
    h2 = h + _B_ref(_layernorm(h, axis=-1), B_w_r, B_w_gate, B_w_up, B_w_down)
    return h2
```

```python
import sys

NAME = "sequential_preLN__mha_block_cached__moe_arch_mod__decode"
DEBUG = False

KV_BYTES = 4 * 32 * 8192 * 192 * 2
W_BYTES = 640 * 6144 * 2

WS_HACC = 0x0000
WS_YACC = 0x4000
WS_STATS = 0x8000
WS_DBG = 0x100000
WS_SIZE = 0x1000000

L_S = 0
L_XNP = 16384
L_QR = 21504
L_QB = 46080
L_OV = 46848
L_WST = 48384
L_GST = 48512
L_OUTP = 0
L_END_A = 48640

SCALE = 0x3d93cd3a
LOG2E = 0x3fb8aa3b
INV640 = 0x3acccccd
EPS = 0x3727c5ac
NINF = 0xff800000


class Asm:
    def __init__(self):
        self.L = []

    def __call__(self, s):
        for line in s.split("\n"):
            line = line.strip()
            if line:
                self.L.append("  " + line)

    def label(self, l):
        self.L.append(l + ":")

    def raw(self, s):
        self.L.append(s)

    def text(self):
        return "\n".join(self.L) + "\n"


def srd(A, d, lo, hi, size):
    A(f"s_mov_b32 s{d}, s{lo}\ns_mov_b32 s{d+1}, s{hi}\ns_mov_b32 s{d+2}, {size}\ns_mov_b32 s{d+3}, 0x00020000")


def rne(A, r):
    A(f"v_cvt_pk_bf16_f32 v{r}, v{r}, v{r}\nv_lshlrev_b32 v{r}, 16, v{r}")


def wave_reduce(A, op, r, t, full=True):
    for dpp in ["quad_perm:[1,0,3,2]", "quad_perm:[2,3,0,1]", "row_half_mirror", "row_mirror"]:
        A(f"s_nop 1\nv_{op}_f32_dpp v{r}, v{r}, v{r} {dpp} row_mask:0xf bank_mask:0xf")
    A(f"v_mov_b32 v{t}, v{r}\ns_nop 1\nv_permlane16_swap_b32 v{r}, v{t}\ns_nop 1\nv_{op}_f32 v{r}, v{r}, v{t}")
    if full:
        A(f"v_mov_b32 v{t}, v{r}\ns_nop 1\nv_permlane32_swap_b32 v{r}, v{t}\ns_nop 1\nv_{op}_f32 v{r}, v{r}, v{t}")


TIMING = False
_stamp_n = [0]
def stamp(A):
    if not TIMING:
        return
    n = _stamp_n[0]; _stamp_n[0] += 1
    assert n < 12
    A(f"s_memrealtime s[96:97]\ns_waitcnt lgkmcnt(0)\ns_mov_b32 s{84+n}, s96")


def stamp_dump(A, base):
    if not TIMING:
        return
    A(f"s_lshl_b32 s98, s2, 4\ns_add_u32 s98, s98, s59\ns_lshl_b32 s98, s98, 6\ns_add_u32 s98, s98, {base}")
    A("v_mov_b32 v6, 0\ns_mov_b64 exec, 1")
    for n in range(_stamp_n[0]):
        A(f"v_mov_b32 v5, s{84+n}\nbuffer_store_dword v5, v6, s[48:51], s98 offen offset:{4*n}")
    A("s_mov_b64 exec, -1")
    _stamp_n[0] = 0


SB = 128
D = 32


def stream_issue(A, j, nt=True):
    r = SB + 4 * j
    A(f"buffer_load_dwordx3 v[{r}:{r+2}], v2, s[52:55], s62 offen nt")
    A("s_add_u32 s62, s62, 6144")


def k_slot(A, j, q, reissue=True, wait=D - 1):
    r = SB + 4 * j
    A(f"s_waitcnt vmcnt({wait})")
    A(f"v_dot2_f32_bf16 v{r+3}, v{r}, v{q}, 0")
    A(f"v_dot2_f32_bf16 v{r+3}, v{r+1}, v{q+1}, v{r+3}")
    A(f"v_dot2_f32_bf16 v{r+3}, v{r+2}, v{q+2}, v{r+3}")
    if reissue:
        stream_issue(A, j)


def k_group_reduce(A, g, tau):
    P = [SB + 4 * (8 * g + i) + 3 for i in range(8)]
    A("s_nop 1")
    for k in range(4):
        A(f"v_permlane16_swap_b32 v{P[2*k]}, v{P[2*k+1]}")
    A("s_nop 0")
    for k in range(4):
        A(f"v_add_f32 v{P[2*k]}, v{P[2*k]}, v{P[2*k+1]}")
    B = [P[0], P[2], P[4], P[6]]
    A("s_nop 0")
    A(f"v_add_f32_dpp v{B[0]}, v{B[0]}, v{B[0]} row_ror:8 row_mask:0xf bank_mask:0x3")
    A(f"v_add_f32_dpp v{B[2]}, v{B[2]}, v{B[2]} row_ror:8 row_mask:0xf bank_mask:0x3")
    A(f"v_add_f32_dpp v{B[0]}, v{B[1]}, v{B[1]} row_ror:8 row_mask:0xf bank_mask:0xc")
    A(f"v_add_f32_dpp v{B[2]}, v{B[3]}, v{B[3]} row_ror:8 row_mask:0xf bank_mask:0xc")
    A("s_nop 1")
    A(f"v_add_f32_dpp v{B[0]}, v{B[0]}, v{B[0]} row_half_mirror row_mask:0xf bank_mask:0x5")
    A(f"v_add_f32_dpp v{B[0]}, v{B[2]}, v{B[2]} row_half_mirror row_mask:0xf bank_mask:0xa")
    A("s_nop 1")
    A(f"v_add_f32_dpp v{B[0]}, v{B[0]}, v{B[0]} quad_perm:[1,0,3,2] row_mask:0xf bank_mask:0xf")
    A("s_nop 1")
    A(f"v_add_f32_dpp v{B[0]}, v{B[0]}, v{B[0]} quad_perm:[2,3,0,1] row_mask:0xf bank_mask:0xf")
    r = B[0]
    A(f"v_cvt_pk_bf16_f32 v{r}, v{r}, v{r}")
    A(f"v_lshlrev_b32 v{r}, 16, v{r}")
    A(f"v_mul_f32 v{r}, s82, v{r}")
    A(f"v_cvt_pk_bf16_f32 v{r}, v{r}, v{r}")
    A(f"v_lshlrev_b32 v{r}, 16, v{r}")
    A(f"v_max_f32 v4, v4, v{r}")
    A("s_mov_b64 exec, s[80:81]")
    A(f"ds_write_b32 v3, v{r} offset:{L_S + tau*8192 + g*32}")
    A("s_mov_b64 exec, -1")


def v_slot(A, j, acc, reissue=True, wait=D - 1):
    r = SB + 4 * j
    p = 32 + j
    t = 26 + (j & 1)
    A(f"s_waitcnt vmcnt({wait})")
    A(f"v_lshlrev_b32 v{t}, 16, v{p}")
    A(f"v_dot2c_f32_bf16 v{acc+0}, v{r}, v{p}")
    A(f"v_dot2c_f32_bf16 v{acc+2}, v{r+1}, v{p}")
    A(f"v_dot2c_f32_bf16 v{acc+4}, v{r+2}, v{p}")
    A(f"v_dot2c_f32_bf16 v{acc+1}, v{r}, v{t}")
    A(f"v_dot2c_f32_bf16 v{acc+3}, v{r+1}, v{t}")
    A(f"v_dot2c_f32_bf16 v{acc+5}, v{r+2}, v{t}")
    if reissue:
        stream_issue(A, j)


def local_stats(A, tau):
    A("s_waitcnt lgkmcnt(0)")
    A(f"ds_read_b128 v[28:31], v7 offset:{L_S + tau*8192}")
    wave_reduce(A, "max", 4, 5)
    A("s_waitcnt lgkmcnt(0)")
    for e in range(4):
        A(f"v_sub_f32 v{28+e}, v{28+e}, v4")
    for e in range(4):
        A(f"v_mul_f32 v{28+e}, s83, v{28+e}")
    for e in range(4):
        A(f"v_exp_f32 v{28+e}, v{28+e}")
    A("s_nop 0")
    A("v_add_f32 v28, v28, v29\nv_add_f32 v30, v30, v31\nv_add_f32 v5, v28, v30")
    wave_reduce(A, "add", 5, 6)
    A("s_lshl_b32 s64, s59, 3\nv_mov_b32 v6, s64")
    A("s_mov_b64 exec, 1")
    A(f"ds_write_b64 v6, v[4:5] offset:{L_WST + tau*64}")
    A("s_mov_b64 exec, -1")
    A(f"v_mov_b32 v4, {NINF:#x}")


def combine8(A, m, l, n_full):
    A(f"v_mov_b32 v5, v{m}")
    for dpp in ["quad_perm:[1,0,3,2]", "quad_perm:[2,3,0,1]", "row_half_mirror"][:n_full]:
        A(f"s_nop 1\nv_max_f32_dpp v5, v5, v5 {dpp} row_mask:0xf bank_mask:0xf")
    A(f"v_sub_f32 v{m}, v{m}, v5\nv_mul_f32 v{m}, s83, v{m}\nv_exp_f32 v{m}, v{m}\ns_nop 0\nv_mul_f32 v{l}, v{l}, v{m}")
    for dpp in ["quad_perm:[1,0,3,2]", "quad_perm:[2,3,0,1]", "row_half_mirror"][:n_full]:
        A(f"s_nop 1\nv_add_f32_dpp v{l}, v{l}, v{l} {dpp} row_mask:0xf bank_mask:0xf")
    A(f"v_mov_b32 v{m}, v5")


def wg_publish_payload(A, tau):
    A("v_and_b32 v6, 7, v1\nv_lshlrev_b32 v6, 3, v6")
    A(f"ds_read_b64 v[30:31], v6 offset:{L_WST + tau*64}\ns_waitcnt lgkmcnt(0)")
    combine8(A, 30, 31, 3)
    A("v_mov_b32 v6, 0\ns_mov_b64 exec, 1")
    A(f"buffer_store_dwordx2 v[30:31], v6, s[48:51], s{72+tau} offen sc0 sc1")
    A("s_mov_b64 exec, -1")


def flag_add(A, tau):
    A("v_mov_b32 v6, 0\nv_mov_b32 v5, s79")
    A("s_mov_b64 exec, 1")
    A(f"buffer_atomic_add v5, v6, s[44:47], s{76+tau} offen sc1")
    A("s_mov_b64 exec, -1")


def poll_issue(A, tau):
    A("v_mov_b32 v6, 0")
    A(f"buffer_load_dword v126, v6, s[44:47], s{76+tau} offen sc0 sc1")


def poll_check_and_payload(A, tau, name):
    A("v_readfirstlane_b32 s64, v126")
    A("s_nop 3")
    A.label(f"L_chk_{name}")
    A("s_lshr_b32 s64, s64, s78\ns_and_b32 s64, s64, 0xff\ns_cmp_eq_u32 s64, 4")
    A(f"s_cbranch_scc1 L_ok_{name}")
    A("s_sleep 8")
    poll_issue(A, tau)
    A("s_waitcnt vmcnt(0)\nv_readfirstlane_b32 s64, v126\ns_nop 3")
    A(f"s_branch L_chk_{name}")
    A.label(f"L_ok_{name}")
    A("v_and_b32 v6, 3, v1\nv_lshlrev_b32 v6, 3, v6")
    A(f"buffer_load_dwordx2 v[124:125], v6, s[48:51], s{74+tau} offen sc0 sc1")


def global_stats(A, tau):
    combine8(A, 124, 125, 2)
    A("v_rcp_f32 v6, v125\ns_nop 0")
    A("v_fma_f32 v5, -v125, v6, 1.0\nv_fma_f32 v125, v5, v6, v6")
    A("v_mov_b32 v6, 0\ns_mov_b64 exec, 1")
    A(f"ds_write_b64 v6, v[124:125] offset:{L_GST + tau*8}")
    A("s_mov_b64 exec, -1")


def scores_to_p(A, tau):
    A("v_mov_b32 v6, 0")
    A(f"ds_read_b128 v[26:29], v7 offset:{L_S + tau*8192}")
    A(f"ds_read_b64 v[30:31], v6 offset:{L_GST + tau*8}")
    A("s_waitcnt lgkmcnt(0)")
    for e in range(4):
        A(f"v_sub_f32 v{26+e}, v{26+e}, v30")
    for e in range(4):
        A(f"v_mul_f32 v{26+e}, s83, v{26+e}")
    for e in range(4):
        A(f"v_exp_f32 v{26+e}, v{26+e}")
    A("s_nop 0")
    for e in range(4):
        A(f"v_mul_f32 v{26+e}, v{26+e}, v31")
    for e in range(4):
        A(f"v_cvt_pk_bf16_f32 v{26+e}, v{26+e}, v6")
    A(f"ds_write_b128 v7, v[26:29] offset:{L_S + tau*8192}")
    A("s_waitcnt lgkmcnt(0)")


def switch_stream(A, srd_base, off_sreg):
    A(f"s_mov_b32 s52, s{srd_base}\ns_mov_b32 s53, s{srd_base+1}\ns_mov_b32 s54, s{srd_base+2}\ns_mov_b32 s55, s{srd_base+3}")
    A(f"s_mov_b32 s62, s{off_sreg}")


def hooks(A, tau, name):
    A(f"s_cmp_eq_u32 s59, 0\ns_cbranch_scc0 L_{name}_hx")
    A(f"s_cmp_eq_u32 s63, 0\ns_cbranch_scc0 L_{name}_a")
    wg_publish_payload(A, tau)
    A(f"s_branch L_{name}_hx")
    A.label(f"L_{name}_a")
    A(f"s_cmp_eq_u32 s63, 1\ns_cbranch_scc0 L_{name}_b")
    flag_add(A, tau)
    A(f"s_branch L_{name}_hx")
    A.label(f"L_{name}_b")
    A(f"s_cmp_eq_u32 s63, 2\ns_cbranch_scc0 L_{name}_c")
    poll_issue(A, tau)
    A(f"s_branch L_{name}_hx")
    A.label(f"L_{name}_c")
    poll_check_and_payload(A, tau, name)
    A.label(f"L_{name}_hx")


def gen_attn(A):
    A.raw(".globl attn_kernel\n.p2align 8\n.type attn_kernel,@function\nattn_kernel:")
    A("s_cmp_ge_u32 s2, 256\ns_cbranch_scc1 L_endA")
    A("s_load_dwordx8 s[8:15], s[0:1], 0")
    A("s_load_dwordx2 s[16:17], s[0:1], 32")
    A("s_load_dwordx4 s[20:23], s[0:1], 88")
    A("v_and_b32 v1, 63, v0\nv_lshrrev_b32 v5, 6, v0\ns_nop 0\nv_readfirstlane_b32 s59, v5")
    A("s_lshr_b32 s56, s2, 3\ns_and_b32 s64, s2, 7\ns_lshr_b32 s57, s64, 2\ns_and_b32 s58, s64, 3")
    A("v_mul_u32_u24 v2, 12, v1")
    A(f"s_mov_b32 s82, {SCALE:#x}\ns_mov_b32 s83, {LOG2E:#x}")
    A("s_mov_b32 s80, 0x11111111\ns_mov_b32 s81, 0x11111111")
    A("s_lshl_b32 s65, s57, 6\ns_add_u32 s65, s65, s56\ns_add_u32 s66, s65, 32")
    A("s_mul_i32 s67, s58, 786432\ns_mul_i32 s68, s59, 768\ns_add_u32 s67, s67, s68")
    A("s_mul_i32 s60, s65, 3145728\ns_add_u32 s60, s60, s67")
    A("s_add_u32 s61, s60, 100663296")
    A("s_lshl_b32 s68, s58, 3")
    A(f"s_lshl_b32 s74, s65, 7\ns_add_u32 s74, s74, {WS_STATS}\ns_add_u32 s75, s74, 4096")
    A("s_add_u32 s72, s74, s68\ns_add_u32 s73, s75, s68")
    A("s_lshr_b32 s76, s65, 2\ns_lshl_b32 s76, s76, 2\ns_add_u32 s77, s76, 32")
    A("s_and_b32 s78, s56, 3\ns_lshl_b32 s78, s78, 3\ns_lshl_b32 s79, 1, s78")
    A("s_waitcnt lgkmcnt(0)")
    stamp(A)
    srd(A, 24, 8, 9, 5120)
    srd(A, 28, 10, 11, KV_BYTES)
    srd(A, 32, 12, 13, KV_BYTES)
    srd(A, 36, 14, 15, W_BYTES)
    srd(A, 40, 16, 17, W_BYTES)
    srd(A, 44, 20, 21, 256)
    srd(A, 48, 22, 23, WS_SIZE)
    A("s_cmp_eq_u32 s2, 0\ns_cbranch_scc0 L_nozero\ns_cmp_eq_u32 s59, 7\ns_cbranch_scc0 L_nozero")
    A("v_mov_b32 v8, 0\nv_mov_b32 v9, 0\nv_mov_b32 v10, 0\nv_mov_b32 v11, 0\nv_lshlrev_b32 v5, 4, v1")
    for i in range(10):
        A(f"buffer_store_dwordx4 v[8:11], v5, s[48:51], 0 offen offset:{i*1024 if i < 4 else 0} sc0 sc1" if i < 4 else
          f"s_mov_b32 s64, {WS_HACC + i*1024}\nbuffer_store_dwordx4 v[8:11], v5, s[48:51], s64 offen sc0 sc1")
    for i in range(10):
        A(f"s_mov_b32 s64, {WS_YACC + i*1024}\nbuffer_store_dwordx4 v[8:11], v5, s[48:51], s64 offen sc0 sc1")
    A.label("L_nozero")
    A("s_and_b32 s64, s59, 1\ns_lshl_b32 s68, s57, 1\ns_add_u32 s64, s64, s68\ns_mul_i32 s64, s64, 1280")
    A("v_lshlrev_b32 v5, 4, v1\nv_lshlrev_b32 v6, 2, v1")
    A("buffer_load_dwordx4 v[112:115], v5, s[24:27], s64 offen")
    A("buffer_load_dword v116, v6, s[24:27], s64 offen offset:1024")
    A("v_lshrrev_b32 v5, 5, v1\nv_mul_u32_u24 v5, 12288, v5\nv_and_b32 v6, 31, v1\nv_mul_u32_u24 v6, 12, v6\nv_add_u32 v26, v5, v6")
    A("s_mul_i32 s69, s56, 384\ns_mul_i32 s68, s59, 24576\ns_add_u32 s69, s69, s68")
    for j in range(20):
        A(f"buffer_load_dwordx3 v[{32+4*j}:{34+4*j}], v26, s[36:39], s69 offen\ns_add_u32 s69, s69, {8*24576}")
    switch_stream(A, 28, 60)
    for j in range(D):
        stream_issue(A, j)
    A("v_lshrrev_b32 v5, 4, v1")
    A("v_bfe_u32 v6, v1, 2, 2")
    A("v_and_b32 v7, 1, v6\nv_lshlrev_b32 v7, 1, v7\nv_lshrrev_b32 v6, 1, v6\nv_add_u32 v6, v6, v7")
    A("v_lshlrev_b32 v6, 1, v6\nv_and_b32 v7, 1, v5\nv_add_u32 v6, v6, v7")
    A("v_lshrrev_b32 v5, 1, v5")
    A("v_lshlrev_b32 v5, 9, v5\nv_lshlrev_b32 v6, 2, v6\nv_add_u32 v3, v5, v6")
    A("s_lshl_b32 s64, s59, 10\nv_add_u32 v3, s64, v3")
    A("v_lshlrev_b32 v7, 4, v1\nv_add_u32 v7, s64, v7")
    A(f"v_mov_b32 v4, {NINF:#x}")
    A("s_cmp_lt_u32 s59, 2\ns_cbranch_scc0 L_ln_done")
    A("s_waitcnt vmcnt(52)")
    for e in range(4):
        A(f"v_lshlrev_b32 v{8+2*e}, 16, v{112+e}\nv_and_b32 v{9+2*e}, 0xffff0000, v{112+e}")
    A("v_lshlrev_b32 v16, 16, v116\nv_and_b32 v17, 0xffff0000, v116")
    layernorm10(A, 8, 18)
    A("v_mov_b32 v6, 0")
    for e in range(10):
        A(f"v_cvt_pk_bf16_f32 v{8+e}, v{8+e}, v6")
    A("v_and_b32 v5, 1, v1\nv_mul_u32_u24 v5, 1280, v5\nv_lshrrev_b32 v6, 1, v1\nv_lshlrev_b32 v6, 2, v6\nv_add_u32 v5, v5, v6")
    A("s_mul_i32 s64, s59, 2560\nv_add_u32 v5, s64, v5")
    for e in range(8):
        A(f"ds_write_b32 v5, v{8+e} offset:{L_XNP + e*160}")
    A("v_and_b32 v5, 7, v1\nv_mul_u32_u24 v5, 320, v5\nv_lshrrev_b32 v6, 3, v1\nv_lshlrev_b32 v6, 2, v6\nv_add_u32 v5, v5, v6")
    A("v_add_u32 v5, s64, v5")
    for e in range(2):
        A(f"ds_write_b32 v5, v{16+e} offset:{L_XNP + 128 + e*160}")
    A("s_waitcnt lgkmcnt(0)")
    A.label("L_ln_done")
    A("s_waitcnt lgkmcnt(0)\ns_barrier")
    stamp(A)
    for i in range(12):
        A(f"v_mov_b32 v{14+i}, 0")
    A("v_lshrrev_b32 v5, 5, v1\ns_lshl_b32 s64, s59, 1\nv_add_u32 v5, s64, v5\nv_mul_u32_u24 v27, 160, v5")
    for rnd in range(2):
        if rnd == 0:
            A("s_waitcnt vmcnt(32)")
            A("s_cmp_eq_u32 s2, 0\ns_cbranch_scc0 L_nozf\ns_cmp_eq_u32 s59, 7\ns_cbranch_scc0 L_nozf")
            A("v_mov_b32 v5, 1\nv_mov_b32 v6, 0\ns_mov_b64 exec, 1")
            A("buffer_store_dword v5, v6, s[44:47], 0 offen offset:160 sc0 sc1")
            A("s_mov_b64 exec, -1")
            A.label("L_nozf")
        else:
            A("s_waitcnt vmcnt(0)")
        for c in range(5):
            cc = rnd * 5 + c
            pb = 112 + 8 * (c & 1)
            A(f"ds_read_b128 v[{pb}:{pb+3}], v27 offset:{L_XNP + cc*16}")
            A(f"ds_read_b128 v[{pb+4}:{pb+7}], v27 offset:{L_XNP + 2560 + cc*16}")
            A("s_waitcnt lgkmcnt(0)")
            for jj in range(4):
                j = c * 4 + jj
                w = 32 + 4 * j
                for tau in range(2):
                    p = pb + 4 * tau + jj
                    a = 14 + 6 * tau
                    t = 5 + tau
                    A(f"v_lshlrev_b32 v{t}, 16, v{p}")
                    for e in range(3):
                        A(f"v_dot2c_f32_bf16 v{a+2*e}, v{w+e}, v{p}")
                    for e in range(3):
                        A(f"v_dot2c_f32_bf16 v{a+2*e+1}, v{w+e}, v{t}")
                if rnd == 0:
                    A(f"buffer_load_dwordx3 v[{w}:{w+2}], v26, s[36:39], s69 offen\ns_add_u32 s69, s69, {8*24576}")
    cross_wave_reduce_192(A, "q")
    A("v_and_b32 v5, 31, v1\nv_mul_u32_u24 v5, 12, v5")
    for tau in range(2):
        for e in range(3):
            A(f"ds_read_b32 v{8+3*tau+e}, v5 offset:{L_QB + tau*384 + e*4}")
    A("s_waitcnt lgkmcnt(0)")
    if DEBUG:
        A("s_cmp_eq_u32 s59, 0\ns_cbranch_scc0 L_dbgq")
        A(f"s_lshl_b32 s64, s2, 12\ns_add_u32 s64, s64, {WS_DBG}\nv_lshlrev_b32 v5, 5, v1")
        for i in range(6):
            A(f"buffer_store_dword v{8+i}, v5, s[48:51], s64 offen offset:{i*4}")
        A.label("L_dbgq")

    stamp(A)
    for tau in range(2):
        A("s_mov_b32 s63, 0")
        A.label(f"L_K{tau}")
        A("s_waitcnt lgkmcnt(0)\ns_barrier")
        A(f"s_cmp_eq_u32 s63, 3\ns_cbranch_scc0 L_K{tau}_h3")
        if tau == 0:
            switch_stream(A, 28, 61)
        else:
            switch_stream(A, 32, 60)
        A.label(f"L_K{tau}_h3")
        if tau == 1:
            hooks(A, 0, "K1")
        for g in range(4):
            for i in range(8):
                k_slot(A, 8 * g + i, 8 + 3 * tau)
            k_group_reduce(A, g, tau)
        A("v_add_u32 v3, 128, v3")
        A(f"s_add_u32 s63, s63, 1\ns_cmp_lt_u32 s63, 4\ns_cbranch_scc1 L_K{tau}")
        A("v_subrev_u32 v3, 512, v3")
        local_stats(A, tau)
        stamp(A)
    A("s_cmp_eq_u32 s59, 0\ns_cbranch_scc0 L_gs0")
    global_stats(A, 0)
    A.label("L_gs0")
    for i in range(12):
        A(f"v_mov_b32 v{14+i}, 0")
    A("v_lshrrev_b32 v5, 5, v1\nv_lshlrev_b32 v5, 9, v5\ns_lshl_b32 s64, s59, 10\nv_add_u32 v3, s64, v5")
    for tau in range(2):
        A("s_mov_b32 s63, 0")
        A.label(f"L_V{tau}")
        A("s_waitcnt lgkmcnt(0)\ns_barrier")
        A(f"s_cmp_eq_u32 s63, 0\ns_cbranch_scc0 L_V{tau}_h0")
        scores_to_p(A, tau)
        A.label(f"L_V{tau}_h0")
        A(f"s_cmp_eq_u32 s63, 3\ns_cbranch_scc0 L_V{tau}_h3")
        if tau == 0:
            switch_stream(A, 32, 61)
        else:
            A("s_mov_b32 s54, 0")
        A.label(f"L_V{tau}_h3")
        if tau == 0:
            hooks(A, 1, "V0")
        for c in range(8):
            A(f"ds_read_b128 v[{32+4*c}:{35+4*c}], v3 offset:{L_S + tau*8192 + c*16}")
        A("s_waitcnt lgkmcnt(0)")
        for j in range(D):
            v_slot(A, j, 14 + 6 * tau)
        A("v_add_u32 v3, 128, v3")
        A(f"s_add_u32 s63, s63, 1\ns_cmp_lt_u32 s63, 4\ns_cbranch_scc1 L_V{tau}")
        A("v_subrev_u32 v3, 512, v3")
        if tau == 0:
            A("s_cmp_eq_u32 s59, 0\ns_cbranch_scc0 L_gs1")
            global_stats(A, 1)
            A.label("L_gs1")
        stamp(A)
    A("s_waitcnt vmcnt(0)")
    A("s_mul_i32 s64, s56, 192\ns_mul_i32 s68, s59, 24\ns_add_u32 s64, s64, s68\ns_mul_i32 s64, s64, 1280")
    A("v_lshlrev_b32 v5, 4, v1\nv_lshlrev_b32 v6, 2, v1")
    for ii in range(24):
        A(f"buffer_load_dwordx4 v[{32+4*ii}:{35+4*ii}], v5, s[40:43], s64 offen")
        A(f"buffer_load_dword v{128+ii}, v6, s[40:43], s64 offen offset:1024")
        A("s_add_u32 s64, s64, 1280")
    A("s_nop 3")
    cross_wave_reduce_192(A, "o")
    if DEBUG:
        A(f"v_lshlrev_b32 v5, 2, v0\nv_cmp_gt_u32 vcc, 384, v0\ns_and_saveexec_b64 s[64:65], vcc")
        A(f"ds_read_b32 v6, v5 offset:{L_OV}\ns_waitcnt lgkmcnt(0)")
        A(f"s_lshl_b32 s68, s2, 12\ns_add_u32 s68, s68, {WS_DBG + 2048}")
        A("buffer_store_dword v6, v5, s[48:51], s68 offen")
        A("s_mov_b64 exec, -1")
    stamp(A)
    A("s_mul_i32 s64, s59, 192\nv_mov_b32 v7, s64")
    for c in range(12):
        A(f"ds_read_b128 v[{160+4*c}:{163+4*c}], v7 offset:{L_OV + c*16}")
    for i in range(20):
        A(f"v_mov_b32 v{208+i}, 0")
    A("s_waitcnt vmcnt(0) lgkmcnt(0)")
    for ii in range(24):
        o0 = 160 + 2 * ii
        for e in range(5):
            w = (32 + 4 * ii + e) if e < 4 else (128 + ii)
            A(f"v_lshlrev_b32 v5, 16, v{w}\nv_and_b32 v6, 0xffff0000, v{w}")
            A(f"v_fmac_f32 v{208+2*e}, v5, v{o0}\nv_fmac_f32 v{209+2*e}, v6, v{o0}")
            A(f"v_fmac_f32 v{218+2*e}, v5, v{o0+1}\nv_fmac_f32 v{219+2*e}, v6, v{o0+1}")
    A("s_mul_i32 s64, s59, 5120\nv_lshlrev_b32 v5, 5, v1\nv_add_u32 v5, s64, v5\nv_lshlrev_b32 v6, 3, v1\nv_add_u32 v6, s64, v6")
    for tau in range(2):
        A(f"ds_write_b128 v5, v[{208+10*tau}:{211+10*tau}] offset:{L_OUTP + tau*2560}")
        A(f"ds_write_b128 v5, v[{212+10*tau}:{215+10*tau}] offset:{L_OUTP + tau*2560 + 16}")
        A(f"ds_write_b64 v6, v[{216+10*tau}:{217+10*tau}] offset:{L_OUTP + tau*2560 + 2048}")
    A("s_cmp_eq_u32 s59, 0\ns_cbranch_scc0 L_zf_ok\nv_mov_b32 v6, 0")
    A.label("L_zf")
    A("buffer_load_dword v5, v6, s[44:47], 0 offen offset:160 sc0 sc1\ns_waitcnt vmcnt(0)\nv_readfirstlane_b32 s64, v5\ns_nop 3")
    A("s_cmp_eq_u32 s64, 1\ns_cbranch_scc1 L_zf_ok\ns_sleep 8\ns_branch L_zf")
    A.label("L_zf_ok")
    A("s_waitcnt lgkmcnt(0)\ns_barrier")
    A(f"s_mul_i32 s64, s57, 5120\ns_add_u32 s64, s64, {WS_HACC}\nv_lshlrev_b32 v5, 2, v0")
    for k in range(3):
        for w in range(8):
            A(f"ds_read_b32 v{8+8*k+w}, v5 offset:{L_OUTP + k*2048 + w*5120}")
    A("s_waitcnt lgkmcnt(0)")
    for k in range(3):
        r = 8 + 8 * k
        for w in range(4):
            A(f"v_add_f32 v{r+w}, v{r+w}, v{r+4+w}")
        A(f"v_add_f32 v{r}, v{r}, v{r+2}\nv_add_f32 v{r+1}, v{r+1}, v{r+3}\nv_add_f32 v{r}, v{r}, v{r+1}")
    A("buffer_atomic_add_f32 v8, v5, s[48:51], s64 offen")
    A("buffer_atomic_add_f32 v16, v5, s[48:51], s64 offen offset:2048")
    A("v_cmp_gt_u32 vcc, 256, v0\ns_and_saveexec_b64 s[66:67], vcc\ns_cbranch_execz L_endA2")
    A("s_add_u32 s64, s64, 4096\ns_nop 3")
    A("buffer_atomic_add_f32 v24, v5, s[48:51], s64 offen")
    A.label("L_endA2")
    A("s_mov_b64 exec, -1")
    stamp(A)
    stamp_dump(A, WS_DBG + 0x200000)
    A.label("L_endA")
    A("s_endpgm")


def layernorm10(A, x, t):
    s, u, m, vv, r = t, t + 1, t + 2, t + 3, t + 4
    A(f"v_add_f32 v{s}, v{x}, v{x+1}")
    for e in range(2, 10):
        A(f"v_add_f32 v{s}, v{s}, v{x+e}")
    wave_reduce(A, "add", s, u)
    A(f"v_mul_f32 v{m}, {INV640:#x}, v{s}")
    A(f"v_sub_f32 v{u}, v{x}, v{m}\nv_mul_f32 v{s}, v{u}, v{u}")
    for e in range(1, 10):
        A(f"v_sub_f32 v{u}, v{x+e}, v{m}\nv_fmac_f32 v{s}, v{u}, v{u}")
    wave_reduce(A, "add", s, u)
    A(f"v_mul_f32 v{vv}, {INV640:#x}, v{s}")
    rne(A, m)
    rne(A, vv)
    A(f"v_add_f32 v{vv}, {EPS:#x}, v{vv}")
    rne(A, vv)
    A(f"v_sqrt_f32 v{vv}, v{vv}\ns_nop 0")
    rne(A, vv)
    A(f"v_rcp_f32 v{r}, v{vv}\ns_nop 0")
    for e in range(10):
        A(f"v_sub_f32 v{x+e}, v{x+e}, v{m}")
        rne(A, x + e)
        A(f"v_mul_f32 v{s}, v{x+e}, v{r}")
        A(f"v_fma_f32 v{u}, -v{s}, v{vv}, v{x+e}")
        A(f"v_fma_f32 v{x+e}, v{u}, v{r}, v{s}")
        rne(A, x + e)


def cross_wave_reduce_192(A, kind):
    A("v_lshrrev_b32 v5, 5, v1\ns_lshl_b32 s64, s59, 1\nv_add_u32 v5, s64, v5\nv_mul_u32_u24 v5, 768, v5")
    A("v_and_b32 v6, 31, v1\nv_mul_u32_u24 v6, 24, v6\nv_add_u32 v5, v5, v6")
    for tau in range(2):
        for e in range(3):
            A(f"ds_write_b64 v5, v[{14+6*tau+2*e}:{15+6*tau+2*e}] offset:{L_QR + tau*12288 + e*8}")
    A("s_waitcnt lgkmcnt(0)\ns_barrier")
    A("v_cmp_gt_u32 vcc, 384, v0\ns_and_saveexec_b64 s[64:65], vcc")
    A(f"s_cbranch_execz L_cw_{kind}")
    A("v_cmp_le_u32 vcc, 192, v0\nv_mov_b32 v6, 0\nv_mov_b32 v5, 11520\ns_nop 0\nv_cndmask_b32 v6, v6, v5, vcc")
    A("v_lshlrev_b32 v5, 2, v0\nv_add_u32 v5, v5, v6")
    T = 112 if kind == "q" else 232
    for s in range(16):
        A(f"ds_read_b32 v{T+s}, v5 offset:{L_QR + s*768}")
    A("s_waitcnt lgkmcnt(0)")
    for s in range(8):
        A(f"v_add_f32 v{T+s}, v{T+s}, v{T+8+s}")
    for s in range(4):
        A(f"v_add_f32 v{T+s}, v{T+s}, v{T+4+s}")
    A(f"v_add_f32 v{T}, v{T}, v{T+2}\nv_add_f32 v{T+1}, v{T+1}, v{T+3}\nv_add_f32 v{T}, v{T}, v{T+1}")
    if kind == "q":
        A(f"v_cvt_pk_bf16_f32 v{T}, v{T}, v{T}\nv_lshlrev_b32 v5, 1, v0")
        A(f"ds_write_b16 v5, v{T} offset:{L_QB}")
    else:
        A(f"v_lshlrev_b32 v5, 3, v0\nv_mov_b32 v6, 0\nv_mov_b32 v{T+1}, 1532\nv_cndmask_b32 v6, v6, v{T+1}, vcc\nv_sub_u32 v5, v5, v6")
        A(f"ds_write_b32 v5, v{T} offset:{L_OV}")
    A.label(f"L_cw_{kind}")
    A("s_mov_b64 exec, -1")
    A("s_waitcnt lgkmcnt(0)\ns_barrier")


def kd(name, vgpr, sgpr=100):
    return f""".amdhsa_kernel {name}
  .amdhsa_next_free_vgpr {vgpr}
  .amdhsa_next_free_sgpr {sgpr}
  .amdhsa_accum_offset {vgpr}
  .amdhsa_group_segment_fixed_size 0
  .amdhsa_kernarg_size 104
  .amdhsa_user_sgpr_count 2
  .amdhsa_user_sgpr_kernarg_segment_ptr 1
  .amdhsa_system_sgpr_workgroup_id_x 1
.end_amdhsa_kernel
"""


HEADER = """; Kernarg layout for this problem (104 bytes, ptrs only, base s[0:1]):
;   offset  88: d_debug   256 bytes
"""


def main():
    global DEBUG, TIMING
    out = sys.argv[1] if len(sys.argv) > 1 else f"cdna_kernels/{NAME}.s"
    DEBUG = len(sys.argv) > 2 and sys.argv[2] == "debug"
    TIMING = len(sys.argv) > 2 and sys.argv[2] == "timing"
    only_a = len(sys.argv) > 3 and sys.argv[3] == "A"
    A = Asm()
    A.raw(HEADER.rstrip())
    A.raw(f"; @launch kernel=attn_kernel grid=(256,1,1) block=(512,1,1) lds={L_END_A}")
    if not only_a:
        import gen_mlp
        A.raw(gen_mlp.launch_line())
    A.raw('.amdgcn_target "amdgcn-amd-amdhsa--gfx950"\n.text')
    gen_attn(A)
    if not only_a:
        gen_mlp.gen_mlp(A, DEBUG)
    A.raw('.section .rodata,"a"\n.p2align 6')
    A.raw(kd("attn_kernel", 256))
    if not only_a:
        A.raw(".p2align 6")
        A.raw(gen_mlp.kd())
    open(out, "w").write(A.text())


if __name__ == "__main__":
    import gen as _g
    _g.main()
```

```python
from gen import stamp, stamp_dump, srd, rne, wave_reduce, layernorm10, WS_HACC, WS_YACC, WS_SIZE, WS_DBG, LOG2E
import gen

NWG_B = 48
L_XN2 = 0
L_H = 10240
L_GU = 20480
L_ACT = 21504
L_SIG = 22016
L_FLAG = 22032
L_GUP = 22528
L_YR = 30720
L_END_B = 30720 + 81920

WG_BYTES = 640 * 1536 * 2


def launch_line():
    return f"; @launch kernel=mlp_kernel grid=({NWG_B},1,1) block=(1024,1,1) lds={L_END_B}"


def kd():
    return gen.kd("mlp_kernel", 128)


def sigmoid_mul(A, x, out, t):
    A(f"v_mul_f32 v{t}, s83, v{x}\nv_sub_f32 v{t}, 0, v{t}\nv_exp_f32 v{t}, v{t}\ns_nop 0\nv_add_f32 v{t}, 1.0, v{t}\nv_rcp_f32 v{out}, v{t}\ns_nop 0")
    A(f"v_fma_f32 v{t}, -v{t}, v{out}, 1.0\nv_fma_f32 v{out}, v{t}, v{out}, v{out}")


def gen_mlp(A, debug=False):
    A.raw(".globl mlp_kernel\n.p2align 8\n.type mlp_kernel,@function\nmlp_kernel:")
    A(f"s_cmp_ge_u32 s2, {NWG_B}\ns_cbranch_scc1 L_endB")
    A("s_load_dwordx2 s[8:9], s[0:1], 0")
    A("s_load_dwordx8 s[12:19], s[0:1], 48")
    A("s_load_dwordx4 s[20:23], s[0:1], 80")
    A("s_load_dwordx2 s[10:11], s[0:1], 96")
    A("v_and_b32 v1, 63, v0\nv_lshrrev_b32 v5, 6, v0\ns_nop 0\nv_readfirstlane_b32 s59, v5")
    A(f"s_mov_b32 s83, {LOG2E:#x}")
    A("s_waitcnt lgkmcnt(0)")
    stamp(A)
    srd(A, 24, 8, 9, 5120)
    srd(A, 28, 12, 13, 1280)
    srd(A, 32, 14, 15, WG_BYTES)
    srd(A, 36, 16, 17, WG_BYTES)
    srd(A, 40, 18, 19, WG_BYTES)
    srd(A, 44, 22, 23, 256)
    srd(A, 48, 10, 11, WS_SIZE)
    srd(A, 72, 20, 21, 5120)
    A("s_cmp_lt_u32 s59, 4\ns_cbranch_scc0 L_b_noln0")
    A(f"s_mul_i32 s64, s59, 2560\ns_add_u32 s64, s64, {WS_HACC}\ns_mul_i32 s65, s59, 1280")
    A("v_lshlrev_b32 v5, 5, v1\nv_lshlrev_b32 v6, 3, v1\nv_lshlrev_b32 v7, 4, v1\nv_lshlrev_b32 v8, 2, v1")
    A("buffer_load_dwordx4 v[100:103], v5, s[48:51], s64 offen")
    A("buffer_load_dwordx4 v[104:107], v5, s[48:51], s64 offen offset:16")
    A("buffer_load_dwordx2 v[108:109], v6, s[48:51], s64 offen offset:2048")
    A("buffer_load_dwordx4 v[110:113], v7, s[24:27], s65 offen")
    A("buffer_load_dword v114, v8, s[24:27], s65 offen offset:1024")
    A("buffer_load_dwordx4 v[116:119], v7, s[28:31], 0 offen")
    A("buffer_load_dword v120, v8, s[28:31], 0 offen offset:1024")
    A.label("L_b_noln0")
    A("s_and_b32 s60, s59, 1\ns_lshr_b32 s61, s59, 1")
    A("s_cmp_eq_u32 s60, 0\ns_cselect_b32 s52, s32, s36\ns_cselect_b32 s53, s33, s37\ns_mov_b32 s54, s34\ns_mov_b32 s55, s35")
    A("v_lshrrev_b32 v5, 2, v1\nv_mul_u32_u24 v5, 3072, v5\nv_and_b32 v6, 3, v1\nv_lshlrev_b32 v6, 4, v6\nv_add_u32 v9, v5, v6")
    A("s_mul_i32 s64, s61, 49152\ns_lshl_b32 s65, s2, 6\ns_add_u32 s64, s64, s65")
    for i in range(5):
        A(f"buffer_load_dwordx4 v[{32+4*i}:{35+4*i}], v9, s[52:55], s64 offen\ns_add_u32 s64, s64, {128*3072}")
    A("s_cmp_lt_u32 s59, 8\ns_cbranch_scc0 L_b_nodown0")
    A("s_lshl_b32 s64, s2, 5\ns_lshl_b32 s65, s59, 2\ns_add_u32 s64, s64, s65\ns_mul_i32 s64, s64, 1280")
    A("v_lshlrev_b32 v7, 4, v1\nv_lshlrev_b32 v8, 2, v1")
    for ii in range(4):
        A(f"buffer_load_dwordx4 v[{52+4*ii}:{55+4*ii}], v7, s[40:43], s64 offen")
        A(f"buffer_load_dword v{68+ii}, v8, s[40:43], s64 offen offset:1024")
        A("s_add_u32 s64, s64, 1280")
    A.label("L_b_nodown0")
    A("s_cmp_lt_u32 s59, 4\ns_cbranch_scc0 L_b_noln1")
    A("s_waitcnt vmcnt(13)")
    for e in range(10):
        rne(A, 100 + e)
    for e in range(4):
        A(f"v_lshlrev_b32 v{12+2*e}, 16, v{110+e}\nv_and_b32 v{13+2*e}, 0xffff0000, v{110+e}")
    A("v_lshlrev_b32 v20, 16, v114\nv_and_b32 v21, 0xffff0000, v114")
    for e in range(10):
        A(f"v_add_f32 v{12+e}, v{12+e}, v{100+e}")
        rne(A, 12 + e)
    A("s_mul_i32 s64, s59, 2560\nv_lshlrev_b32 v5, 5, v1\nv_add_u32 v5, s64, v5\nv_lshlrev_b32 v6, 3, v1\nv_add_u32 v6, s64, v6")
    A(f"ds_write_b128 v5, v[12:15] offset:{L_H}")
    A(f"ds_write_b128 v5, v[16:19] offset:{L_H+16}")
    A(f"ds_write_b64 v6, v[20:21] offset:{L_H+2048}")
    A("s_nop 1")
    layernorm10(A, 12, 22)
    A("s_lshl_b32 s64, s59, 2\nv_lshlrev_b32 v5, 7, v1\nv_add_u32 v5, s64, v5\nv_lshlrev_b32 v6, 5, v1\nv_add_u32 v6, s64, v6")
    for e in range(8):
        A(f"ds_write_b32 v5, v{12+e} offset:{L_XN2 + e*16}")
    for e in range(2):
        A(f"ds_write_b32 v6, v{20+e} offset:{L_XN2 + 8192 + e*16}")
    for e in range(4):
        A(f"v_lshlrev_b32 v{100+2*e}, 16, v{116+e}\nv_and_b32 v{101+2*e}, 0xffff0000, v{116+e}")
    A("v_lshlrev_b32 v108, 16, v120\nv_and_b32 v109, 0xffff0000, v120")
    A("v_mul_f32 v22, v12, v100")
    for e in range(1, 10):
        A(f"v_fmac_f32 v22, v{12+e}, v{100+e}")
    wave_reduce(A, "add", 22, 23)
    rne(A, 22)
    sigmoid_mul(A, 22, 24, 23)
    rne(A, 24)
    A(f"v_mov_b32 v5, s64\ns_mov_b64 exec, 1\nds_write_b32 v5, v24 offset:{L_SIG}\ns_mov_b64 exec, -1")
    A.label("L_b_noln1")
    A("s_waitcnt lgkmcnt(0)\ns_barrier")
    stamp(A)
    A("s_lshl_b32 s64, s61, 8\nv_lshrrev_b32 v5, 2, v1\nv_lshlrev_b32 v5, 4, v5\nv_add_u32 v5, s64, v5")
    for i in range(5):
        A(f"ds_read_b128 v[{72+4*i}:{75+4*i}], v5 offset:{L_XN2 + i*2048}")
    for a in range(32):
        A(f"v_mov_b32 v{96+a}, 0")
    A("s_waitcnt vmcnt(8) lgkmcnt(0)")
    A("s_cmp_lt_u32 s59, 8\ns_cbranch_scc1 L_b_w8\ns_waitcnt vmcnt(0)")
    A.label("L_b_w8")
    for i in range(5):
        for e in range(4):
            w = 32 + 4 * i + e
            A(f"v_lshlrev_b32 v5, 16, v{w}\nv_and_b32 v6, 0xffff0000, v{w}")
            for b in range(4):
                A(f"v_fmac_f32 v{96+8*b+2*e}, v5, v{72+4*i+b}\nv_fmac_f32 v{97+8*b+2*e}, v6, v{72+4*i+b}")
    R = [96 + a for a in range(32)]
    A("s_nop 1")
    for a in range(16):
        A(f"v_permlane32_swap_b32 v{R[a]}, v{R[a+16]}")
    A("s_nop 0")
    for a in range(16):
        A(f"v_add_f32 v{R[a]}, v{R[a]}, v{R[a+16]}")
    A("s_nop 1")
    for a in range(8):
        A(f"v_permlane16_swap_b32 v{R[a]}, v{R[a+8]}")
    A("s_nop 0")
    for a in range(8):
        A(f"v_add_f32 v{R[a]}, v{R[a]}, v{R[a+8]}")
    A("s_nop 1")
    for a in range(4):
        A(f"v_add_f32_dpp v{R[a]}, v{R[a]}, v{R[a]} row_ror:8 row_mask:0xf bank_mask:0x3")
    for a in range(4):
        A(f"v_add_f32_dpp v{R[a]}, v{R[a+4]}, v{R[a+4]} row_ror:8 row_mask:0xf bank_mask:0xc")
    A("s_nop 1")
    for a in range(2):
        A(f"v_add_f32_dpp v{R[a]}, v{R[a]}, v{R[a]} row_shl:4 row_mask:0xf bank_mask:0x5")
    for a in range(2):
        A(f"v_add_f32_dpp v{R[a]}, v{R[a+2]}, v{R[a+2]} row_shr:4 row_mask:0xf bank_mask:0xa")
    A("v_lshrrev_b32 v5, 4, v1\nv_lshlrev_b32 v5, 7, v5\nv_and_b32 v6, 3, v1\nv_lshlrev_b32 v6, 5, v6\nv_add_u32 v5, v5, v6")
    A("v_bfe_u32 v6, v1, 2, 2\nv_lshlrev_b32 v6, 3, v6\nv_add_u32 v5, v5, v6\ns_lshl_b32 s64, s60, 9\nv_add_u32 v5, s64, v5")
    A("s_lshl_b32 s64, s61, 10\nv_add_u32 v5, s64, v5")
    A(f"ds_write_b64 v5, v[{R[0]}:{R[1]}] offset:{L_GUP}")
    A("s_waitcnt lgkmcnt(0)\ns_barrier")
    stamp(A)
    A("s_cmp_lt_u32 s59, 2\ns_cbranch_scc0 L_b_noact")
    A("v_lshlrev_b32 v5, 2, v0")
    for w in range(8):
        A(f"ds_read_b32 v{32+w}, v5 offset:{L_GUP + w*1024}\nds_read_b32 v{40+w}, v5 offset:{L_GUP + 512 + w*1024}")
    A("s_waitcnt lgkmcnt(0)")
    for base, dst in ((32, 12), (40, 13)):
        for w in range(4):
            A(f"v_add_f32 v{base+w}, v{base+w}, v{base+4+w}")
        A(f"v_add_f32 v{base}, v{base}, v{base+2}\nv_add_f32 v{base+1}, v{base+1}, v{base+3}\nv_add_f32 v{dst}, v{base}, v{base+1}")
    rne(A, 12)
    rne(A, 13)
    sigmoid_mul(A, 12, 14, 15)
    A("v_mul_f32 v14, v14, v12")
    rne(A, 14)
    A("v_mul_f32 v14, v14, v13")
    rne(A, 14)
    A("v_and_b32 v5, 31, v0\nv_lshlrev_b32 v5, 4, v5\nv_lshrrev_b32 v6, 5, v0\nv_lshlrev_b32 v6, 2, v6\nv_add_u32 v5, v5, v6")
    A(f"ds_write_b32 v5, v14 offset:{L_ACT}")
    A.label("L_b_noact")
    A("s_waitcnt lgkmcnt(0)\ns_barrier")
    stamp(A)
    A("s_cmp_lt_u32 s59, 8\ns_cbranch_scc0 L_b_nodown1")
    A("s_lshl_b32 s64, s59, 6\nv_mov_b32 v5, s64")
    for ii in range(4):
        A(f"ds_read_b128 v[{72+4*ii}:{75+4*ii}], v5 offset:{L_ACT + ii*16}")
    for a in range(40):
        A(f"v_mov_b32 v{88+a}, 0")
    A("s_waitcnt vmcnt(0) lgkmcnt(0)")
    for ii in range(4):
        for e in range(5):
            w = (52 + 4 * ii + e) if e < 4 else (68 + ii)
            A(f"v_lshlrev_b32 v5, 16, v{w}\nv_and_b32 v6, 0xffff0000, v{w}")
            for b in range(4):
                A(f"v_fmac_f32 v{88+10*b+2*e}, v5, v{72+4*ii+b}\nv_fmac_f32 v{89+10*b+2*e}, v6, v{72+4*ii+b}")
    A("s_mul_i32 s64, s59, 10240\nv_lshlrev_b32 v5, 5, v1\nv_add_u32 v5, s64, v5\nv_lshlrev_b32 v6, 3, v1\nv_add_u32 v6, s64, v6")
    for b in range(4):
        A(f"ds_write_b128 v5, v[{88+10*b}:{91+10*b}] offset:{L_YR + b*2560}")
        A(f"ds_write_b128 v5, v[{92+10*b}:{95+10*b}] offset:{L_YR + b*2560 + 16}")
        A(f"ds_write_b64 v6, v[{96+10*b}:{97+10*b}] offset:{L_YR + b*2560 + 2048}")
    A.label("L_b_nodown1")
    A("s_waitcnt lgkmcnt(0)\ns_barrier")
    stamp(A)
    A(f"s_mov_b32 s64, {WS_YACC}\nv_lshlrev_b32 v5, 2, v0")
    for k in range(3):
        A(f"v_add_u32 v6, {L_YR + k*4096}, v5")
        for w in range(8):
            A(f"ds_read_b32 v{32+8*k+w}, v6 offset:{w*10240 if w < 6 else 0}" if w < 6 else
              f"v_add_u32 v7, {w*10240}, v6\nds_read_b32 v{32+8*k+w}, v7")
    A("s_waitcnt lgkmcnt(0)")
    for k in range(3):
        r = 32 + 8 * k
        for w in range(4):
            A(f"v_add_f32 v{r+w}, v{r+w}, v{r+4+w}")
        A(f"v_add_f32 v{r}, v{r}, v{r+2}\nv_add_f32 v{r+1}, v{r+1}, v{r+3}\nv_add_f32 v{12+k}, v{r}, v{r+1}")
    A("buffer_atomic_add_f32 v12, v5, s[48:51], s64 offen")
    A(f"s_mov_b32 s64, {WS_YACC+4096}\ns_nop 0")
    A("buffer_atomic_add_f32 v13, v5, s[48:51], s64 offen")
    A("s_cmp_lt_u32 s59, 8\ns_cbranch_scc0 L_b_noat")
    A(f"s_mov_b32 s64, {WS_YACC+8192}\ns_nop 0")
    A("buffer_atomic_add_f32 v14, v5, s[48:51], s64 offen")
    A.label("L_b_noat")
    A("s_waitcnt vmcnt(0)\ns_barrier")
    stamp(A)
    A("s_cmp_eq_u32 s59, 0\ns_cbranch_scc0 L_b_noctr")
    A("v_mov_b32 v5, 1\nv_mov_b32 v6, 0\ns_mov_b64 exec, 1")
    A("buffer_atomic_add v5, v6, s[44:47], 0 offen sc0 sc1")
    A("s_waitcnt vmcnt(0)")
    A(f"ds_write_b32 v6, v5 offset:{L_FLAG}")
    A("s_mov_b64 exec, -1")
    A.label("L_b_noctr")
    A("s_waitcnt lgkmcnt(0)\ns_barrier")
    A(f"v_mov_b32 v6, 0\nds_read_b32 v5, v6 offset:{L_FLAG}\ns_waitcnt lgkmcnt(0)\nv_readfirstlane_b32 s64, v5\ns_nop 3")
    stamp(A)
    stamp_dump(A, WS_DBG + 0x300000)
    A(f"s_cmp_eq_u32 s64, {NWG_B-1}\ns_cbranch_scc0 L_endB")
    for k in range(3):
        if k == 2:
            A("s_cmp_lt_u32 s59, 8\ns_cbranch_scc0 L_endB")
        A(f"v_add_u32 v20, {1024*k}, v0")
        A(f"v_lshlrev_b32 v5, 2, v20\ns_mov_b32 s64, {WS_YACC}\ns_nop 0")
        A("buffer_load_dword v12, v5, s[48:51], s64 offen sc0 sc1")
        A(f"ds_read_b32 v13, v5 offset:{L_H}")
        A("v_mov_b32 v6, 0")
        for th in (640, 1280, 1920):
            A(f"v_cmp_le_u32 vcc, {th}, v20\ns_nop 1\nv_addc_co_u32 v6, vcc, 0, v6, vcc")
        A("v_mul_u32_u24 v7, 640, v6\nv_sub_u32 v7, v20, v7")
        A("v_lshlrev_b32 v7, 4, v7\nv_lshlrev_b32 v6, 2, v6\nv_add_u32 v7, v7, v6")
        A(f"ds_read_b32 v14, v7 offset:{L_XN2}\nds_read_b32 v15, v6 offset:{L_SIG}")
        A("s_waitcnt vmcnt(0) lgkmcnt(0)")
        rne(A, 12)
        A("v_mul_f32 v12, v12, v15")
        rne(A, 12)
        A("v_add_f32 v12, v12, v14")
        rne(A, 12)
        A("v_add_f32 v12, v12, v13")
        A("v_cvt_pk_bf16_f32 v12, v12, v12\nv_lshlrev_b32 v5, 1, v20")
        A("buffer_store_short v12, v5, s[72:75], 0 offen")
    A.label("L_endB")
    A("s_endpgm")
```

```python
import sys

NAME = "sequential_preLN__mha_block_cached__moe_arch_mod__decode"
DEBUG = False

KV_BYTES = 4 * 32 * 8192 * 192 * 2
W_BYTES = 640 * 6144 * 2

WS_HACC = 0x0000
WS_YACC = 0x4000
WS_STATS = 0x8000
WS_DBG = 0x100000
WS_SIZE = 0x1000000

L_S = 0
L_XNP = 16384
L_QR = 21504
L_QB = 46080
L_OV = 46848
L_WST = 48384
L_GST = 48512
L_OUTP = 0
L_END_A = 48640

SCALE = 0x3d93cd3a
LOG2E = 0x3fb8aa3b
INV640 = 0x3acccccd
EPS = 0x3727c5ac
NINF = 0xff800000


class Asm:
    def __init__(self):
        self.L = []

    def __call__(self, s):
        for line in s.split("\n"):
            line = line.strip()
            if line:
                self.L.append("  " + line)

    def label(self, l):
        self.L.append(l + ":")

    def raw(self, s):
        self.L.append(s)

    def text(self):
        return "\n".join(self.L) + "\n"


def srd(A, d, lo, hi, size):
    A(f"s_mov_b32 s{d}, s{lo}\ns_mov_b32 s{d+1}, s{hi}\ns_mov_b32 s{d+2}, {size}\ns_mov_b32 s{d+3}, 0x00020000")


def rne(A, r):
    A(f"v_cvt_pk_bf16_f32 v{r}, v{r}, v{r}\nv_lshlrev_b32 v{r}, 16, v{r}")


def wave_reduce(A, op, r, t, full=True):
    for dpp in ["quad_perm:[1,0,3,2]", "quad_perm:[2,3,0,1]", "row_half_mirror", "row_mirror"]:
        A(f"s_nop 1\nv_{op}_f32_dpp v{r}, v{r}, v{r} {dpp} row_mask:0xf bank_mask:0xf")
    A(f"v_mov_b32 v{t}, v{r}\ns_nop 1\nv_permlane16_swap_b32 v{r}, v{t}\ns_nop 1\nv_{op}_f32 v{r}, v{r}, v{t}")
    if full:
        A(f"v_mov_b32 v{t}, v{r}\ns_nop 1\nv_permlane32_swap_b32 v{r}, v{t}\ns_nop 1\nv_{op}_f32 v{r}, v{r}, v{t}")


TIMING = False
_stamp_n = [0]
def stamp(A, dup=False):
    if not TIMING:
        return
    n = _stamp_n[0]; _stamp_n[0] += 1
    if dup:
        n -= 1; _stamp_n[0] -= 1
    assert n < 12, n
    A(f"s_memrealtime s[96:97]\ns_waitcnt lgkmcnt(0)\ns_mov_b32 s{84+n}, s96")


def stamp_dump(A, base):
    if not TIMING:
        return
    A(f"s_lshl_b32 s98, s2, 4\ns_add_u32 s98, s98, s59\ns_lshl_b32 s98, s98, 6\ns_add_u32 s98, s98, {base}")
    A("v_mov_b32 v6, 0\ns_mov_b64 exec, 1")
    for n in range(_stamp_n[0]):
        A(f"v_mov_b32 v5, s{84+n}\nbuffer_store_dword v5, v6, s[48:51], s98 offen offset:{4*n}")
    A("s_mov_b64 exec, -1")
    _stamp_n[0] = 0


SB = 128
D = 32


def stream_issue(A, j, nt=True):
    r = SB + 4 * j
    A(f"buffer_load_dwordx3 v[{r}:{r+2}], v2, s[52:55], s62 offen nt")
    A("s_add_u32 s62, s62, 6144")


def k_slot(A, j, q, reissue=True, wait=D - 1):
    r = SB + 4 * j
    A(f"s_waitcnt vmcnt({wait})")
    A(f"v_dot2_f32_bf16 v{r+3}, v{r}, v{q}, 0")
    A(f"v_dot2_f32_bf16 v{r+3}, v{r+1}, v{q+1}, v{r+3}")
    A(f"v_dot2_f32_bf16 v{r+3}, v{r+2}, v{q+2}, v{r+3}")
    if reissue:
        stream_issue(A, j)


def k_group_reduce(A, g, tau):
    P = [SB + 4 * (8 * g + i) + 3 for i in range(8)]
    A("s_nop 1")
    for k in range(4):
        A(f"v_permlane16_swap_b32 v{P[2*k]}, v{P[2*k+1]}")
    A("s_nop 0")
    for k in range(4):
        A(f"v_add_f32 v{P[2*k]}, v{P[2*k]}, v{P[2*k+1]}")
    B = [P[0], P[2], P[4], P[6]]
    A("s_nop 0")
    A(f"v_add_f32_dpp v{B[0]}, v{B[0]}, v{B[0]} row_ror:8 row_mask:0xf bank_mask:0x3")
    A(f"v_add_f32_dpp v{B[2]}, v{B[2]}, v{B[2]} row_ror:8 row_mask:0xf bank_mask:0x3")
    A(f"v_add_f32_dpp v{B[0]}, v{B[1]}, v{B[1]} row_ror:8 row_mask:0xf bank_mask:0xc")
    A(f"v_add_f32_dpp v{B[2]}, v{B[3]}, v{B[3]} row_ror:8 row_mask:0xf bank_mask:0xc")
    A("s_nop 1")
    A(f"v_add_f32_dpp v{B[0]}, v{B[0]}, v{B[0]} row_half_mirror row_mask:0xf bank_mask:0x5")
    A(f"v_add_f32_dpp v{B[0]}, v{B[2]}, v{B[2]} row_half_mirror row_mask:0xf bank_mask:0xa")
    A("s_nop 1")
    A(f"v_add_f32_dpp v{B[0]}, v{B[0]}, v{B[0]} quad_perm:[1,0,3,2] row_mask:0xf bank_mask:0xf")
    A("s_nop 1")
    A(f"v_add_f32_dpp v{B[0]}, v{B[0]}, v{B[0]} quad_perm:[2,3,0,1] row_mask:0xf bank_mask:0xf")
    r = B[0]
    A(f"v_cvt_pk_bf16_f32 v{r}, v{r}, v{r}")
    A(f"v_lshlrev_b32 v{r}, 16, v{r}")
    A(f"v_mul_f32 v{r}, s82, v{r}")
    A(f"v_cvt_pk_bf16_f32 v{r}, v{r}, v{r}")
    A(f"v_lshlrev_b32 v{r}, 16, v{r}")
    A(f"v_max_f32 v4, v4, v{r}")
    A("s_mov_b64 exec, s[80:81]")
    A(f"ds_write_b32 v3, v{r} offset:{L_S + tau*8192 + g*32}")
    A("s_mov_b64 exec, -1")


def v_slot(A, j, acc, reissue=True, wait=D - 1):
    r = SB + 4 * j
    p = 32 + j
    t = 26 + (j & 1)
    A(f"s_waitcnt vmcnt({wait})")
    A(f"v_lshlrev_b32 v{t}, 16, v{p}")
    A(f"v_dot2c_f32_bf16 v{acc+0}, v{r}, v{p}")
    A(f"v_dot2c_f32_bf16 v{acc+2}, v{r+1}, v{p}")
    A(f"v_dot2c_f32_bf16 v{acc+4}, v{r+2}, v{p}")
    A(f"v_dot2c_f32_bf16 v{acc+1}, v{r}, v{t}")
    A(f"v_dot2c_f32_bf16 v{acc+3}, v{r+1}, v{t}")
    A(f"v_dot2c_f32_bf16 v{acc+5}, v{r+2}, v{t}")
    if reissue:
        stream_issue(A, j)


def local_stats(A, tau):
    A("s_waitcnt lgkmcnt(0)")
    A(f"ds_read_b128 v[28:31], v7 offset:{L_S + tau*8192}")
    wave_reduce(A, "max", 4, 5)
    A("s_waitcnt lgkmcnt(0)")
    for e in range(4):
        A(f"v_sub_f32 v{28+e}, v{28+e}, v4")
    for e in range(4):
        A(f"v_mul_f32 v{28+e}, s83, v{28+e}")
    for e in range(4):
        A(f"v_exp_f32 v{28+e}, v{28+e}")
    A("s_nop 0")
    A("v_add_f32 v28, v28, v29\nv_add_f32 v30, v30, v31\nv_add_f32 v5, v28, v30")
    wave_reduce(A, "add", 5, 6)
    A("s_lshl_b32 s64, s59, 3\nv_mov_b32 v6, s64")
    A("s_mov_b64 exec, 1")
    A(f"ds_write_b64 v6, v[4:5] offset:{L_WST + tau*64}")
    A("s_mov_b64 exec, -1")
    A(f"v_mov_b32 v4, {NINF:#x}")


def combine8(A, m, l, n_full):
    A(f"v_mov_b32 v5, v{m}")
    for dpp in ["quad_perm:[1,0,3,2]", "quad_perm:[2,3,0,1]", "row_half_mirror"][:n_full]:
        A(f"s_nop 1\nv_max_f32_dpp v5, v5, v5 {dpp} row_mask:0xf bank_mask:0xf")
    A(f"v_sub_f32 v{m}, v{m}, v5\nv_mul_f32 v{m}, s83, v{m}\nv_exp_f32 v{m}, v{m}\ns_nop 0\nv_mul_f32 v{l}, v{l}, v{m}")
    for dpp in ["quad_perm:[1,0,3,2]", "quad_perm:[2,3,0,1]", "row_half_mirror"][:n_full]:
        A(f"s_nop 1\nv_add_f32_dpp v{l}, v{l}, v{l} {dpp} row_mask:0xf bank_mask:0xf")
    A(f"v_mov_b32 v{m}, v5")


def wg_publish_payload(A, tau):
    A("v_and_b32 v6, 7, v1\nv_lshlrev_b32 v6, 3, v6")
    A(f"ds_read_b64 v[30:31], v6 offset:{L_WST + tau*64}\ns_waitcnt lgkmcnt(0)")
    combine8(A, 30, 31, 3)
    A("v_mov_b32 v6, 0\ns_mov_b64 exec, 1")
    A(f"buffer_store_dwordx2 v[30:31], v6, s[48:51], s{72+tau} offen sc0 sc1")
    A("s_mov_b64 exec, -1")


def flag_add(A, tau):
    A("v_mov_b32 v6, 0\nv_mov_b32 v5, s79")
    A("s_mov_b64 exec, 1")
    A(f"buffer_atomic_add v5, v6, s[44:47], s{76+tau} offen sc1")
    A("s_mov_b64 exec, -1")


def poll_issue(A, tau):
    A("v_mov_b32 v6, 0")
    A(f"buffer_load_dword v126, v6, s[44:47], s{76+tau} offen sc0 sc1")


def poll_check_and_payload(A, tau, name):
    A("v_readfirstlane_b32 s64, v126")
    A("s_nop 3")
    A.label(f"L_chk_{name}")
    A("s_lshr_b32 s64, s64, s78\ns_and_b32 s64, s64, 0xff\ns_cmp_eq_u32 s64, 4")
    A(f"s_cbranch_scc1 L_ok_{name}")
    A("s_sleep 8")
    poll_issue(A, tau)
    A("s_waitcnt vmcnt(0)\nv_readfirstlane_b32 s64, v126\ns_nop 3")
    A(f"s_branch L_chk_{name}")
    A.label(f"L_ok_{name}")
    A("v_and_b32 v6, 3, v1\nv_lshlrev_b32 v6, 3, v6")
    A(f"buffer_load_dwordx2 v[124:125], v6, s[48:51], s{74+tau} offen sc0 sc1")


def global_stats(A, tau):
    combine8(A, 124, 125, 2)
    A("v_rcp_f32 v6, v125\ns_nop 0")
    A("v_fma_f32 v5, -v125, v6, 1.0\nv_fma_f32 v125, v5, v6, v6")
    A("v_mov_b32 v6, 0\ns_mov_b64 exec, 1")
    A(f"ds_write_b64 v6, v[124:125] offset:{L_GST + tau*8}")
    A("s_mov_b64 exec, -1")


def scores_to_p(A, tau):
    A("v_mov_b32 v6, 0")
    A(f"ds_read_b128 v[26:29], v7 offset:{L_S + tau*8192}")
    A(f"ds_read_b64 v[30:31], v6 offset:{L_GST + tau*8}")
    A("s_waitcnt lgkmcnt(0)")
    for e in range(4):
        A(f"v_sub_f32 v{26+e}, v{26+e}, v30")
    for e in range(4):
        A(f"v_mul_f32 v{26+e}, s83, v{26+e}")
    for e in range(4):
        A(f"v_exp_f32 v{26+e}, v{26+e}")
    A("s_nop 0")
    for e in range(4):
        A(f"v_mul_f32 v{26+e}, v{26+e}, v31")
    for e in range(4):
        A(f"v_cvt_pk_bf16_f32 v{26+e}, v{26+e}, v6")
    A(f"ds_write_b128 v7, v[26:29] offset:{L_S + tau*8192}")
    A("s_waitcnt lgkmcnt(0)")


def switch_stream(A, srd_base, off_sreg):
    A(f"s_mov_b32 s52, s{srd_base}\ns_mov_b32 s53, s{srd_base+1}\ns_mov_b32 s54, s{srd_base+2}\ns_mov_b32 s55, s{srd_base+3}")
    A(f"s_mov_b32 s62, s{off_sreg}")


def hooks(A, tau, name):
    A(f"s_cmp_eq_u32 s59, 0\ns_cbranch_scc0 L_{name}_hx")
    A(f"s_cmp_eq_u32 s63, 0\ns_cbranch_scc0 L_{name}_a")
    wg_publish_payload(A, tau)
    A(f"s_branch L_{name}_hx")
    A.label(f"L_{name}_a")
    A(f"s_cmp_eq_u32 s63, 1\ns_cbranch_scc0 L_{name}_b")
    flag_add(A, tau)
    A(f"s_branch L_{name}_hx")
    A.label(f"L_{name}_b")
    A(f"s_cmp_eq_u32 s63, 2\ns_cbranch_scc0 L_{name}_c")
    poll_issue(A, tau)
    A(f"s_branch L_{name}_hx")
    A.label(f"L_{name}_c")
    poll_check_and_payload(A, tau, name)
    A.label(f"L_{name}_hx")


def gen_attn(A):
    A.raw(".globl attn_kernel\n.p2align 8\n.type attn_kernel,@function\nattn_kernel:")
    A("s_cmp_ge_u32 s2, 256\ns_cbranch_scc1 L_endA")
    A("s_load_dwordx8 s[8:15], s[0:1], 0")
    A("s_load_dwordx2 s[16:17], s[0:1], 32")
    A("s_load_dwordx4 s[20:23], s[0:1], 88")
    A("v_and_b32 v1, 63, v0\nv_lshrrev_b32 v5, 6, v0\ns_nop 0\nv_readfirstlane_b32 s59, v5")
    A("s_and_b32 s56, s2, 31\ns_lshr_b32 s64, s2, 5\ns_lshr_b32 s57, s64, 2\ns_and_b32 s58, s64, 3")
    A("v_mul_u32_u24 v2, 12, v1")
    A(f"s_mov_b32 s82, {SCALE:#x}\ns_mov_b32 s83, {LOG2E:#x}")
    A("s_mov_b32 s80, 0x11111111\ns_mov_b32 s81, 0x11111111")
    A("s_lshl_b32 s65, s57, 6\ns_add_u32 s65, s65, s56\ns_add_u32 s66, s65, 32")
    A("s_mul_i32 s67, s58, 786432\ns_mul_i32 s68, s59, 768\ns_add_u32 s67, s67, s68")
    A("s_mul_i32 s60, s65, 3145728\ns_add_u32 s60, s60, s67")
    A("s_add_u32 s61, s60, 100663296")
    A("s_lshl_b32 s68, s58, 3")
    A(f"s_lshl_b32 s74, s65, 7\ns_add_u32 s74, s74, {WS_STATS}\ns_add_u32 s75, s74, 4096")
    A("s_add_u32 s72, s74, s68\ns_add_u32 s73, s75, s68")
    A("s_lshr_b32 s76, s65, 2\ns_lshl_b32 s76, s76, 2\ns_add_u32 s77, s76, 32")
    A("s_and_b32 s78, s56, 3\ns_lshl_b32 s78, s78, 3\ns_lshl_b32 s79, 1, s78")
    A("s_waitcnt lgkmcnt(0)")
    stamp(A)
    srd(A, 24, 8, 9, 5120)
    srd(A, 28, 10, 11, KV_BYTES)
    srd(A, 32, 12, 13, KV_BYTES)
    srd(A, 36, 14, 15, W_BYTES)
    srd(A, 40, 16, 17, W_BYTES)
    srd(A, 44, 20, 21, 256)
    srd(A, 48, 22, 23, WS_SIZE)
    A("s_cmp_eq_u32 s2, 0\ns_cbranch_scc0 L_nozero\ns_cmp_eq_u32 s59, 7\ns_cbranch_scc0 L_nozero")
    A("v_mov_b32 v8, 0\nv_mov_b32 v9, 0\nv_mov_b32 v10, 0\nv_mov_b32 v11, 0\nv_lshlrev_b32 v5, 4, v1")
    for i in range(10):
        A(f"buffer_store_dwordx4 v[8:11], v5, s[48:51], 0 offen offset:{i*1024 if i < 4 else 0} sc0 sc1" if i < 4 else
          f"s_mov_b32 s64, {WS_HACC + i*1024}\nbuffer_store_dwordx4 v[8:11], v5, s[48:51], s64 offen sc0 sc1")
    for i in range(10):
        A(f"s_mov_b32 s64, {WS_YACC + i*1024}\nbuffer_store_dwordx4 v[8:11], v5, s[48:51], s64 offen sc0 sc1")
    A.label("L_nozero")
    A("s_and_b32 s64, s59, 1\ns_lshl_b32 s68, s57, 1\ns_add_u32 s64, s64, s68\ns_mul_i32 s64, s64, 1280")
    A("v_lshlrev_b32 v5, 4, v1\nv_lshlrev_b32 v6, 2, v1")
    A("buffer_load_dwordx4 v[112:115], v5, s[24:27], s64 offen")
    A("buffer_load_dword v116, v6, s[24:27], s64 offen offset:1024")
    A("v_lshrrev_b32 v5, 5, v1\nv_mul_u32_u24 v5, 12288, v5\nv_and_b32 v6, 31, v1\nv_mul_u32_u24 v6, 12, v6\nv_add_u32 v26, v5, v6")
    A("s_mul_i32 s69, s56, 384\ns_mul_i32 s68, s59, 24576\ns_add_u32 s69, s69, s68")
    switch_stream(A, 28, 60)
    for j in range(20):
        A(f"buffer_load_dwordx3 v[{32+4*j}:{34+4*j}], v26, s[36:39], s69 offen\ns_add_u32 s69, s69, {8*24576}")
    stamp(A)
    A("v_lshrrev_b32 v5, 4, v1")
    A("v_bfe_u32 v6, v1, 2, 2")
    A("v_and_b32 v7, 1, v6\nv_lshlrev_b32 v7, 1, v7\nv_lshrrev_b32 v6, 1, v6\nv_add_u32 v6, v6, v7")
    A("v_lshlrev_b32 v6, 1, v6\nv_and_b32 v7, 1, v5\nv_add_u32 v6, v6, v7")
    A("v_lshrrev_b32 v5, 1, v5")
    A("v_lshlrev_b32 v5, 9, v5\nv_lshlrev_b32 v6, 2, v6\nv_add_u32 v3, v5, v6")
    A("s_lshl_b32 s64, s59, 10\nv_add_u32 v3, s64, v3")
    A("v_lshlrev_b32 v7, 4, v1\nv_add_u32 v7, s64, v7")
    A(f"v_mov_b32 v4, {NINF:#x}")
    A("s_cmp_lt_u32 s59, 2\ns_cbranch_scc0 L_ln_done")
    A("s_waitcnt vmcnt(20)")
    stamp(A)
    for e in range(4):
        A(f"v_lshlrev_b32 v{8+2*e}, 16, v{112+e}\nv_and_b32 v{9+2*e}, 0xffff0000, v{112+e}")
    A("v_lshlrev_b32 v16, 16, v116\nv_and_b32 v17, 0xffff0000, v116")
    layernorm10(A, 8, 18)
    A("v_mov_b32 v6, 0")
    for e in range(10):
        A(f"v_cvt_pk_bf16_f32 v{8+e}, v{8+e}, v6")
    A("v_and_b32 v5, 1, v1\nv_mul_u32_u24 v5, 1280, v5\nv_lshrrev_b32 v6, 1, v1\nv_lshlrev_b32 v6, 2, v6\nv_add_u32 v5, v5, v6")
    A("s_mul_i32 s64, s59, 2560\nv_add_u32 v5, s64, v5")
    for e in range(8):
        A(f"ds_write_b32 v5, v{8+e} offset:{L_XNP + e*160}")
    A("v_and_b32 v5, 7, v1\nv_mul_u32_u24 v5, 320, v5\nv_lshrrev_b32 v6, 3, v1\nv_lshlrev_b32 v6, 2, v6\nv_add_u32 v5, v5, v6")
    A("v_add_u32 v5, s64, v5")
    for e in range(2):
        A(f"ds_write_b32 v5, v{16+e} offset:{L_XNP + 128 + e*160}")
    A("s_waitcnt lgkmcnt(0)")
    A("s_branch L_ln_done2")
    A.label("L_ln_done")
    stamp(A, dup=True)
    A.label("L_ln_done2")
    stamp(A)
    A("s_waitcnt lgkmcnt(0)\ns_barrier")
    stamp(A)
    for i in range(12):
        A(f"v_mov_b32 v{14+i}, 0")
    A("v_lshrrev_b32 v5, 5, v1\ns_lshl_b32 s64, s59, 1\nv_add_u32 v5, s64, v5\nv_mul_u32_u24 v27, 160, v5")
    for rnd in range(2):
        if rnd == 0:
            A("s_waitcnt vmcnt(0)")
            A("s_cmp_eq_u32 s2, 0\ns_cbranch_scc0 L_nozf\ns_cmp_eq_u32 s59, 7\ns_cbranch_scc0 L_nozf")
            A("v_mov_b32 v5, 1\nv_mov_b32 v6, 0\ns_mov_b64 exec, 1")
            A("buffer_store_dword v5, v6, s[44:47], 0 offen offset:160 sc0 sc1")
            A("s_mov_b64 exec, -1")
            A.label("L_nozf")
        else:
            A("s_waitcnt vmcnt(0)")
        for c in range(5):
            cc = rnd * 5 + c
            pb = 112 + 8 * (c & 1)
            A(f"ds_read_b128 v[{pb}:{pb+3}], v27 offset:{L_XNP + cc*16}")
            A(f"ds_read_b128 v[{pb+4}:{pb+7}], v27 offset:{L_XNP + 2560 + cc*16}")
            A("s_waitcnt lgkmcnt(0)")
            for jj in range(4):
                j = c * 4 + jj
                w = 32 + 4 * j
                for tau in range(2):
                    p = pb + 4 * tau + jj
                    a = 14 + 6 * tau
                    t = 5 + tau
                    A(f"v_lshlrev_b32 v{t}, 16, v{p}")
                    for e in range(3):
                        A(f"v_dot2c_f32_bf16 v{a+2*e}, v{w+e}, v{p}")
                    for e in range(3):
                        A(f"v_dot2c_f32_bf16 v{a+2*e+1}, v{w+e}, v{t}")
                if rnd == 0:
                    A(f"buffer_load_dwordx3 v[{w}:{w+2}], v26, s[36:39], s69 offen\ns_add_u32 s69, s69, {8*24576}")

    cross_wave_reduce_192(A, "q")
    A("v_and_b32 v5, 31, v1\nv_mul_u32_u24 v5, 12, v5")
    for tau in range(2):
        for e in range(3):
            A(f"ds_read_b32 v{8+3*tau+e}, v5 offset:{L_QB + tau*384 + e*4}")
    A("s_waitcnt lgkmcnt(0)")
    if DEBUG:
        A("s_cmp_eq_u32 s59, 0\ns_cbranch_scc0 L_dbgq")
        A(f"s_lshl_b32 s64, s2, 12\ns_add_u32 s64, s64, {WS_DBG}\nv_lshlrev_b32 v5, 5, v1")
        for i in range(6):
            A(f"buffer_store_dword v{8+i}, v5, s[48:51], s64 offen offset:{i*4}")
        A.label("L_dbgq")

    stamp(A)
    for j in range(32):
        stream_issue(A, j)
    for tau in range(2):
        A("s_mov_b32 s63, 0")
        A.label(f"L_K{tau}")
        A("s_waitcnt lgkmcnt(0)\ns_barrier")
        A(f"s_cmp_eq_u32 s63, 3\ns_cbranch_scc0 L_K{tau}_h3")
        if tau == 0:
            switch_stream(A, 28, 61)
        else:
            switch_stream(A, 32, 60)
        A.label(f"L_K{tau}_h3")
        if tau == 1:
            hooks(A, 0, "K1")
        for g in range(4):
            for i in range(8):
                k_slot(A, 8 * g + i, 8 + 3 * tau)
            k_group_reduce(A, g, tau)
        A("v_add_u32 v3, 128, v3")
        A(f"s_add_u32 s63, s63, 1\ns_cmp_lt_u32 s63, 4\ns_cbranch_scc1 L_K{tau}")
        A("v_subrev_u32 v3, 512, v3")
        local_stats(A, tau)
        stamp(A)
    A("s_cmp_eq_u32 s59, 0\ns_cbranch_scc0 L_gs0")
    global_stats(A, 0)
    A.label("L_gs0")
    for i in range(12):
        A(f"v_mov_b32 v{14+i}, 0")
    A("v_lshrrev_b32 v5, 5, v1\nv_lshlrev_b32 v5, 9, v5\ns_lshl_b32 s64, s59, 10\nv_add_u32 v3, s64, v5")
    X1 = [8, 9, 10, 11, 12, 13, 28, 29, 30, 31, 124, 125]
    for tau in range(2):
        nit = 4 if tau == 0 else 3
        A("s_mov_b32 s63, 0")
        A.label(f"L_V{tau}")
        A("s_waitcnt lgkmcnt(0)\ns_barrier")
        A(f"s_cmp_eq_u32 s63, 0\ns_cbranch_scc0 L_V{tau}_h0")
        scores_to_p(A, tau)
        A.label(f"L_V{tau}_h0")
        if tau == 0:
            A(f"s_cmp_eq_u32 s63, 3\ns_cbranch_scc0 L_V{tau}_h3")
            switch_stream(A, 32, 61)
            A.label(f"L_V{tau}_h3")
            hooks(A, 1, "V0")
        for c in range(8):
            A(f"ds_read_b128 v[{32+4*c}:{35+4*c}], v3 offset:{L_S + tau*8192 + c*16}")
        A("s_waitcnt lgkmcnt(0)")
        for j in range(D):
            v_slot(A, j, 14 + 6 * tau)
        A("v_add_u32 v3, 128, v3")
        A(f"s_add_u32 s63, s63, 1\ns_cmp_lt_u32 s63, {nit}\ns_cbranch_scc1 L_V{tau}")
        if tau == 0:
            A("v_subrev_u32 v3, 512, v3")
            A("s_cmp_eq_u32 s59, 0\ns_cbranch_scc0 L_gs1")
            global_stats(A, 1)
            A.label("L_gs1")
            stamp(A)
    A("s_waitcnt lgkmcnt(0)\ns_barrier")
    for c in range(8):
        A(f"ds_read_b128 v[{32+4*c}:{35+4*c}], v3 offset:{L_S + 8192 + c*16}")
    A("s_mul_i32 s64, s56, 192\ns_mul_i32 s68, s59, 24\ns_add_u32 s64, s64, s68\ns_mul_i32 s64, s64, 1280")
    A("v_lshlrev_b32 v5, 4, v1\nv_lshlrev_b32 v6, 2, v1")
    for ii in range(12):
        A(f"buffer_load_dwordx4 v[{64+4*ii}:{67+4*ii}], v5, s[40:43], s64 offen")
        A(f"buffer_load_dword v{112+ii}, v6, s[40:43], s64 offen offset:1024")
        A("s_add_u32 s64, s64, 1280")
    A("s_waitcnt lgkmcnt(0)")
    for j in range(D):
        v_slot(A, j, 20, reissue=False, wait=min(63, 31 - j + 24 + 2 * min(j, 12)))
        if j < 12:
            A(f"buffer_load_dwordx4 v[{128+4*j}:{131+4*j}], v5, s[40:43], s64 offen")
            A(f"buffer_load_dword v{X1[j]}, v6, s[40:43], s64 offen offset:1024")
            A("s_add_u32 s64, s64, 1280")
    stamp(A)
    cross_wave_reduce_192(A, "o")
    if DEBUG:
        A(f"v_lshlrev_b32 v5, 2, v0\nv_cmp_gt_u32 vcc, 384, v0\ns_and_saveexec_b64 s[64:65], vcc")
        A(f"ds_read_b32 v6, v5 offset:{L_OV}\ns_waitcnt lgkmcnt(0)")
        A(f"s_lshl_b32 s68, s2, 12\ns_add_u32 s68, s68, {WS_DBG + 2048}")
        A("buffer_store_dword v6, v5, s[48:51], s68 offen")
        A("s_mov_b64 exec, -1")
    stamp(A)
    A("s_mul_i32 s64, s59, 192\nv_mov_b32 v7, s64")
    for c in range(12):
        A(f"ds_read_b128 v[{176+4*c}:{179+4*c}], v7 offset:{L_OV + c*16}")
    for i in range(20):
        A(f"v_mov_b32 v{224+i}, 0")
    A("s_waitcnt vmcnt(0) lgkmcnt(0)")
    for ii in range(24):
        o0 = 176 + 2 * ii
        for e in range(5):
            if ii < 12:
                w = (64 + 4 * ii + e) if e < 4 else (112 + ii)
            else:
                w = (128 + 4 * (ii - 12) + e) if e < 4 else X1[ii - 12]
            A(f"v_lshlrev_b32 v5, 16, v{w}\nv_and_b32 v6, 0xffff0000, v{w}")
            A(f"v_fmac_f32 v{224+2*e}, v5, v{o0}\nv_fmac_f32 v{225+2*e}, v6, v{o0}")
            A(f"v_fmac_f32 v{234+2*e}, v5, v{o0+1}\nv_fmac_f32 v{235+2*e}, v6, v{o0+1}")
    A("s_mul_i32 s64, s59, 5120\nv_lshlrev_b32 v5, 5, v1\nv_add_u32 v5, s64, v5\nv_lshlrev_b32 v6, 3, v1\nv_add_u32 v6, s64, v6")
    for tau in range(2):
        A(f"ds_write_b128 v5, v[{224+10*tau}:{227+10*tau}] offset:{L_OUTP + tau*2560}")
        A(f"ds_write_b128 v5, v[{228+10*tau}:{231+10*tau}] offset:{L_OUTP + tau*2560 + 16}")
        A(f"ds_write_b64 v6, v[{232+10*tau}:{233+10*tau}] offset:{L_OUTP + tau*2560 + 2048}")
    A("s_cmp_eq_u32 s59, 0\ns_cbranch_scc0 L_zf_ok\nv_mov_b32 v6, 0")
    A.label("L_zf")
    A("buffer_load_dword v5, v6, s[44:47], 0 offen offset:160 sc0 sc1\ns_waitcnt vmcnt(0)\nv_readfirstlane_b32 s64, v5\ns_nop 3")
    A("s_cmp_eq_u32 s64, 1\ns_cbranch_scc1 L_zf_ok\ns_sleep 8\ns_branch L_zf")
    A.label("L_zf_ok")
    A("s_waitcnt lgkmcnt(0)\ns_barrier")
    A(f"s_mul_i32 s64, s57, 5120\ns_add_u32 s64, s64, {WS_HACC}\nv_lshlrev_b32 v5, 2, v0")
    for k in range(3):
        for w in range(8):
            A(f"ds_read_b32 v{8+8*k+w}, v5 offset:{L_OUTP + k*2048 + w*5120}")
    A("s_waitcnt lgkmcnt(0)")
    for k in range(3):
        r = 8 + 8 * k
        for w in range(4):
            A(f"v_add_f32 v{r+w}, v{r+w}, v{r+4+w}")
        A(f"v_add_f32 v{r}, v{r}, v{r+2}\nv_add_f32 v{r+1}, v{r+1}, v{r+3}\nv_add_f32 v{r}, v{r}, v{r+1}")
    A("buffer_atomic_add_f32 v8, v5, s[48:51], s64 offen")
    A("buffer_atomic_add_f32 v16, v5, s[48:51], s64 offen offset:2048")
    A("v_cmp_gt_u32 vcc, 256, v0\ns_and_saveexec_b64 s[66:67], vcc\ns_cbranch_execz L_endA2")
    A("s_add_u32 s64, s64, 4096\ns_nop 3")
    A("buffer_atomic_add_f32 v24, v5, s[48:51], s64 offen")
    A.label("L_endA2")
    A("s_mov_b64 exec, -1")
    stamp(A)
    stamp_dump(A, WS_DBG + 0x200000)
    A.label("L_endA")
    A("s_endpgm")


def layernorm10(A, x, t):
    s, u, m, vv, r = t, t + 1, t + 2, t + 3, t + 4
    A(f"v_add_f32 v{s}, v{x}, v{x+1}")
    for e in range(2, 10):
        A(f"v_add_f32 v{s}, v{s}, v{x+e}")
    wave_reduce(A, "add", s, u)
    A(f"v_mul_f32 v{m}, {INV640:#x}, v{s}")
    A(f"v_sub_f32 v{u}, v{x}, v{m}\nv_mul_f32 v{s}, v{u}, v{u}")
    for e in range(1, 10):
        A(f"v_sub_f32 v{u}, v{x+e}, v{m}\nv_fmac_f32 v{s}, v{u}, v{u}")
    wave_reduce(A, "add", s, u)
    A(f"v_mul_f32 v{vv}, {INV640:#x}, v{s}")
    rne(A, m)
    rne(A, vv)
    A(f"v_add_f32 v{vv}, {EPS:#x}, v{vv}")
    rne(A, vv)
    A(f"v_sqrt_f32 v{vv}, v{vv}\ns_nop 0")
    rne(A, vv)
    A(f"v_rcp_f32 v{r}, v{vv}\ns_nop 0")
    for e in range(10):
        A(f"v_sub_f32 v{x+e}, v{x+e}, v{m}")
        rne(A, x + e)
        A(f"v_mul_f32 v{s}, v{x+e}, v{r}")
        A(f"v_fma_f32 v{u}, -v{s}, v{vv}, v{x+e}")
        A(f"v_fma_f32 v{x+e}, v{u}, v{r}, v{s}")
        rne(A, x + e)


def cross_wave_reduce_192(A, kind):
    A("v_lshrrev_b32 v5, 5, v1\ns_lshl_b32 s64, s59, 1\nv_add_u32 v5, s64, v5\nv_mul_u32_u24 v5, 768, v5")
    A("v_and_b32 v6, 31, v1\nv_mul_u32_u24 v6, 24, v6\nv_add_u32 v5, v5, v6")
    for tau in range(2):
        for e in range(3):
            A(f"ds_write_b64 v5, v[{14+6*tau+2*e}:{15+6*tau+2*e}] offset:{L_QR + tau*12288 + e*8}")
    A("s_waitcnt lgkmcnt(0)\ns_barrier")
    A("v_cmp_gt_u32 vcc, 384, v0\ns_and_saveexec_b64 s[64:65], vcc")
    A(f"s_cbranch_execz L_cw_{kind}")
    A("v_cmp_le_u32 vcc, 192, v0\nv_mov_b32 v6, 0\nv_mov_b32 v5, 11520\ns_nop 0\nv_cndmask_b32 v6, v6, v5, vcc")
    A("v_lshlrev_b32 v5, 2, v0\nv_add_u32 v5, v5, v6")
    T = 112 if kind == "q" else 240
    for s in range(16):
        A(f"ds_read_b32 v{T+s}, v5 offset:{L_QR + s*768}")
    A("s_waitcnt lgkmcnt(0)")
    for s in range(8):
        A(f"v_add_f32 v{T+s}, v{T+s}, v{T+8+s}")
    for s in range(4):
        A(f"v_add_f32 v{T+s}, v{T+s}, v{T+4+s}")
    A(f"v_add_f32 v{T}, v{T}, v{T+2}\nv_add_f32 v{T+1}, v{T+1}, v{T+3}\nv_add_f32 v{T}, v{T}, v{T+1}")
    if kind == "q":
        A(f"v_cvt_pk_bf16_f32 v{T}, v{T}, v{T}\nv_lshlrev_b32 v5, 1, v0")
        A(f"ds_write_b16 v5, v{T} offset:{L_QB}")
    else:
        A(f"v_lshlrev_b32 v5, 3, v0\nv_mov_b32 v6, 0\nv_mov_b32 v{T+1}, 1532\nv_cndmask_b32 v6, v6, v{T+1}, vcc\nv_sub_u32 v5, v5, v6")
        A(f"ds_write_b32 v5, v{T} offset:{L_OV}")
    A.label(f"L_cw_{kind}")
    A("s_mov_b64 exec, -1")
    A("s_waitcnt lgkmcnt(0)\ns_barrier")


def kd(name, vgpr, sgpr=100):
    return f""".amdhsa_kernel {name}
  .amdhsa_next_free_vgpr {vgpr}
  .amdhsa_next_free_sgpr {sgpr}
  .amdhsa_accum_offset {vgpr}
  .amdhsa_group_segment_fixed_size 0
  .amdhsa_kernarg_size 104
  .amdhsa_user_sgpr_count 2
  .amdhsa_user_sgpr_kernarg_segment_ptr 1
  .amdhsa_system_sgpr_workgroup_id_x 1
.end_amdhsa_kernel
"""


HEADER = """; Kernarg layout for this problem (104 bytes, ptrs only, base s[0:1]):
;   offset  88: d_debug   256 bytes
"""


def main():
    global DEBUG, TIMING
    out = sys.argv[1] if len(sys.argv) > 1 else f"cdna_kernels/{NAME}.s"
    DEBUG = len(sys.argv) > 2 and sys.argv[2] == "debug"
    TIMING = len(sys.argv) > 2 and sys.argv[2] == "timing"
    only_a = len(sys.argv) > 3 and sys.argv[3] == "A"
    A = Asm()
    A.raw(HEADER.rstrip())
    A.raw(f"; @launch kernel=attn_kernel grid=(256,1,1) block=(512,1,1) lds={L_END_A}")
    if not only_a:
        import gen_mlp
        A.raw(gen_mlp.launch_line())
    A.raw('.amdgcn_target "amdgcn-amd-amdhsa--gfx950"\n.text')
    gen_attn(A)
    if not only_a:
        gen_mlp.gen_mlp(A, DEBUG)
    A.raw('.section .rodata,"a"\n.p2align 6')
    A.raw(kd("attn_kernel", 256))
    if not only_a:
        A.raw(".p2align 6")
        A.raw(gen_mlp.kd())
    open(out, "w").write(A.text())


if __name__ == "__main__":
    import gen as _g
    _g.main()
```

```python
import sys

NAME = "sequential_preLN__mha_block_cached__moe_arch_mod__decode"
DEBUG = False

KV_BYTES = 4 * 32 * 8192 * 192 * 2
W_BYTES = 640 * 6144 * 2

WS_HACC = 0x0000
WS_YACC = 0x4000
WS_STATS = 0x8000
WS_CTR = 0x10000
WS_SCG = 0x20000
WS_DBG = 0x400000
WS_SIZE = 0x1000000

L_S = 0
L_XNP = 16384
L_QR = 21504
L_QB = 46080
L_OV = 46848
L_WST = 48384
L_GST = 48512
L_IDS = 48576
L_OUTP = 0
L_END_A = 48640

SCALE = 0x3d93cd3a
LOG2E = 0x3fb8aa3b
INV640 = 0x3acccccd
EPS = 0x3727c5ac
NINF = 0xff800000


class Asm:
    def __init__(self):
        self.L = []

    def __call__(self, s):
        for line in s.split("\n"):
            line = line.strip()
            if line:
                self.L.append("  " + line)

    def label(self, l):
        self.L.append(l + ":")

    def raw(self, s):
        self.L.append(s)

    def text(self):
        return "\n".join(self.L) + "\n"


def srd(A, d, lo, hi, size):
    A(f"s_mov_b32 s{d}, s{lo}\ns_mov_b32 s{d+1}, s{hi}\ns_mov_b32 s{d+2}, {size}\ns_mov_b32 s{d+3}, 0x00020000")


def rne(A, r):
    A(f"v_cvt_pk_bf16_f32 v{r}, v{r}, v{r}\nv_lshlrev_b32 v{r}, 16, v{r}")


def wave_reduce(A, op, r, t, full=True):
    for dpp in ["quad_perm:[1,0,3,2]", "quad_perm:[2,3,0,1]", "row_half_mirror", "row_mirror"]:
        A(f"s_nop 1\nv_{op}_f32_dpp v{r}, v{r}, v{r} {dpp} row_mask:0xf bank_mask:0xf")
    A(f"v_mov_b32 v{t}, v{r}\ns_nop 1\nv_permlane16_swap_b32 v{r}, v{t}\ns_nop 1\nv_{op}_f32 v{r}, v{r}, v{t}")
    if full:
        A(f"v_mov_b32 v{t}, v{r}\ns_nop 1\nv_permlane32_swap_b32 v{r}, v{t}\ns_nop 1\nv_{op}_f32 v{r}, v{r}, v{t}")


TIMING = False
_stamp_n = [0]
def stamp(A, dup=False):
    if not TIMING:
        return
    n = _stamp_n[0]; _stamp_n[0] += 1
    if dup:
        n -= 1; _stamp_n[0] -= 1
    assert n < 12, n
    A(f"s_memrealtime s[96:97]\ns_waitcnt lgkmcnt(0)\ns_mov_b32 s{84+n}, s96")


def stamp_dump(A, base):
    if not TIMING:
        return
    A(f"s_lshl_b32 s98, s2, 4\ns_add_u32 s98, s98, s59\ns_lshl_b32 s98, s98, 6\ns_add_u32 s98, s98, {base}")
    A("v_mov_b32 v6, 0\ns_mov_b64 exec, 1")
    for n in range(_stamp_n[0]):
        A(f"v_mov_b32 v5, s{84+n}\nbuffer_store_dword v5, v6, s[48:51], s98 offen offset:{4*n}")
    A("s_mov_b64 exec, -1")
    _stamp_n[0] = 0


SB = 128
D = 32


def WQR(j):
    return 32 + 4 * j if j < 24 else SB + 64 + 4 * (j - 24)


def stream_issue(A, j, nt=True):
    r = SB + 4 * j
    A(f"buffer_load_dwordx3 v[{r}:{r+2}], v2, s[52:55], s62 offen nt")
    A("s_add_u32 s62, s62, 6144")


def k_slot(A, j, q, reissue=True, wait=D - 1):
    r = SB + 4 * j
    A(f"s_waitcnt vmcnt({wait})")
    A(f"v_dot2_f32_bf16 v{r+3}, v{r}, v{q}, 0")
    A(f"v_dot2_f32_bf16 v{r+3}, v{r+1}, v{q+1}, v{r+3}")
    A(f"v_dot2_f32_bf16 v{r+3}, v{r+2}, v{q+2}, v{r+3}")
    if reissue:
        stream_issue(A, j)


def k_group_reduce(A, g, tau):
    P = [SB + 4 * (8 * g + i) + 3 for i in range(8)]
    A("s_nop 1")
    for k in range(4):
        A(f"v_permlane16_swap_b32 v{P[2*k]}, v{P[2*k+1]}")
    A("s_nop 0")
    for k in range(4):
        A(f"v_add_f32 v{P[2*k]}, v{P[2*k]}, v{P[2*k+1]}")
    B = [P[0], P[2], P[4], P[6]]
    A("s_nop 0")
    A(f"v_add_f32_dpp v{B[0]}, v{B[0]}, v{B[0]} row_ror:8 row_mask:0xf bank_mask:0x3")
    A(f"v_add_f32_dpp v{B[2]}, v{B[2]}, v{B[2]} row_ror:8 row_mask:0xf bank_mask:0x3")
    A(f"v_add_f32_dpp v{B[0]}, v{B[1]}, v{B[1]} row_ror:8 row_mask:0xf bank_mask:0xc")
    A(f"v_add_f32_dpp v{B[2]}, v{B[3]}, v{B[3]} row_ror:8 row_mask:0xf bank_mask:0xc")
    A("s_nop 1")
    A(f"v_add_f32_dpp v{B[0]}, v{B[0]}, v{B[0]} row_half_mirror row_mask:0xf bank_mask:0x5")
    A(f"v_add_f32_dpp v{B[0]}, v{B[2]}, v{B[2]} row_half_mirror row_mask:0xf bank_mask:0xa")
    A("s_nop 1")
    A(f"v_add_f32_dpp v{B[0]}, v{B[0]}, v{B[0]} quad_perm:[1,0,3,2] row_mask:0xf bank_mask:0xf")
    A("s_nop 1")
    A(f"v_add_f32_dpp v{B[0]}, v{B[0]}, v{B[0]} quad_perm:[2,3,0,1] row_mask:0xf bank_mask:0xf")
    r = B[0]
    A(f"v_cvt_pk_bf16_f32 v{r}, v{r}, v{r}")
    A(f"v_lshlrev_b32 v{r}, 16, v{r}")
    A(f"v_mul_f32 v{r}, s82, v{r}")
    A(f"v_cvt_pk_bf16_f32 v{r}, v{r}, v{r}")
    A(f"v_lshlrev_b32 v{r}, 16, v{r}")
    A(f"v_max_f32 v4, v4, v{r}")
    A("s_mov_b64 exec, s[80:81]")
    A(f"ds_write_b32 v3, v{r} offset:{L_S + tau*8192 + g*32}")
    A("s_mov_b64 exec, -1")


def v_slot(A, j, acc, reissue=True, wait=D - 1, p=None):
    r = SB + 4 * j
    if p is None:
        p = 32 + j
    t = 26 + (j & 1)
    A(f"s_waitcnt vmcnt({wait})")
    A(f"v_lshlrev_b32 v{t}, 16, v{p}")
    A(f"v_dot2c_f32_bf16 v{acc+0}, v{r}, v{p}")
    A(f"v_dot2c_f32_bf16 v{acc+2}, v{r+1}, v{p}")
    A(f"v_dot2c_f32_bf16 v{acc+4}, v{r+2}, v{p}")
    A(f"v_dot2c_f32_bf16 v{acc+1}, v{r}, v{t}")
    A(f"v_dot2c_f32_bf16 v{acc+3}, v{r+1}, v{t}")
    A(f"v_dot2c_f32_bf16 v{acc+5}, v{r+2}, v{t}")
    if reissue:
        stream_issue(A, j)


def local_stats(A, tau):
    A("s_waitcnt lgkmcnt(0)")
    A(f"ds_read_b128 v[28:31], v7 offset:{L_S + tau*8192}")
    wave_reduce(A, "max", 4, 5)
    A("s_waitcnt lgkmcnt(0)")
    for e in range(4):
        A(f"v_sub_f32 v{28+e}, v{28+e}, v4")
    for e in range(4):
        A(f"v_mul_f32 v{28+e}, s83, v{28+e}")
    for e in range(4):
        A(f"v_exp_f32 v{28+e}, v{28+e}")
    A("s_nop 0")
    A("v_add_f32 v28, v28, v29\nv_add_f32 v30, v30, v31\nv_add_f32 v5, v28, v30")
    wave_reduce(A, "add", 5, 6)
    A("s_lshl_b32 s64, s59, 3\nv_mov_b32 v6, s64")
    A("s_mov_b64 exec, 1")
    A(f"ds_write_b64 v6, v[4:5] offset:{L_WST + tau*64}")
    A("s_mov_b64 exec, -1")
    A(f"v_mov_b32 v4, {NINF:#x}")


def combine8(A, m, l, n_full):
    A(f"v_mov_b32 v5, v{m}")
    for dpp in ["quad_perm:[1,0,3,2]", "quad_perm:[2,3,0,1]", "row_half_mirror"][:n_full]:
        A(f"s_nop 1\nv_max_f32_dpp v5, v5, v5 {dpp} row_mask:0xf bank_mask:0xf")
    A(f"v_sub_f32 v{m}, v{m}, v5\nv_mul_f32 v{m}, s83, v{m}\nv_exp_f32 v{m}, v{m}\ns_nop 0\nv_mul_f32 v{l}, v{l}, v{m}")
    for dpp in ["quad_perm:[1,0,3,2]", "quad_perm:[2,3,0,1]", "row_half_mirror"][:n_full]:
        A(f"s_nop 1\nv_add_f32_dpp v{l}, v{l}, v{l} {dpp} row_mask:0xf bank_mask:0xf")
    A(f"v_mov_b32 v{m}, v5")


def wg_publish_payload(A, tau):
    A("v_and_b32 v6, 7, v1\nv_lshlrev_b32 v6, 3, v6")
    A(f"ds_read_b64 v[30:31], v6 offset:{L_WST + tau*64}\ns_waitcnt lgkmcnt(0)")
    combine8(A, 30, 31, 3)
    A("v_mov_b32 v6, 0\ns_mov_b64 exec, 1")
    A(f"buffer_store_dwordx2 v[30:31], v6, s[48:51], s{72+tau} offen sc0 sc1")
    A("s_mov_b64 exec, -1")


def flag_add(A, tau):
    A("v_mov_b32 v6, 0\nv_mov_b32 v5, s79")
    A("s_mov_b64 exec, 1")
    A(f"buffer_atomic_add v5, v6, s[44:47], s{76+tau} offen sc1")
    A("s_mov_b64 exec, -1")


def poll_issue(A, tau):
    A("v_mov_b32 v6, 0")
    A(f"buffer_load_dword v126, v6, s[44:47], s{76+tau} offen sc0 sc1")


def poll_check_and_payload(A, tau, name):
    A("v_readfirstlane_b32 s64, v126")
    A("s_nop 3")
    A.label(f"L_chk_{name}")
    A("s_lshr_b32 s64, s64, s78\ns_and_b32 s64, s64, 0xff\ns_cmp_eq_u32 s64, 4")
    A(f"s_cbranch_scc1 L_ok_{name}")
    A("s_sleep 8")
    poll_issue(A, tau)
    A("s_waitcnt vmcnt(0)\nv_readfirstlane_b32 s64, v126\ns_nop 3")
    A(f"s_branch L_chk_{name}")
    A.label(f"L_ok_{name}")
    A("v_and_b32 v6, 3, v1\nv_lshlrev_b32 v6, 3, v6")
    A(f"buffer_load_dwordx2 v[124:125], v6, s[48:51], s{74+tau} offen sc0 sc1")


def global_stats(A, tau):
    combine8(A, 124, 125, 2)
    A("v_rcp_f32 v6, v125\ns_nop 0")
    A("v_fma_f32 v5, -v125, v6, 1.0\nv_fma_f32 v125, v5, v6, v6")
    A("v_mov_b32 v6, 0\ns_mov_b64 exec, 1")
    A(f"ds_write_b64 v6, v[124:125] offset:{L_GST + tau*8}")
    A("s_mov_b64 exec, -1")


def scores_to_p(A, tau):
    A("v_mov_b32 v6, 0")
    A(f"ds_read_b128 v[26:29], v7 offset:{L_S + tau*8192}")
    A(f"ds_read_b64 v[30:31], v6 offset:{L_GST + tau*8}")
    A("s_waitcnt lgkmcnt(0)")
    for e in range(4):
        A(f"v_sub_f32 v{26+e}, v{26+e}, v30")
    for e in range(4):
        A(f"v_mul_f32 v{26+e}, s83, v{26+e}")
    for e in range(4):
        A(f"v_exp_f32 v{26+e}, v{26+e}")
    A("s_nop 0")
    for e in range(4):
        A(f"v_mul_f32 v{26+e}, v{26+e}, v31")
    for e in range(4):
        A(f"v_cvt_pk_bf16_f32 v{26+e}, v{26+e}, v6")
    A(f"ds_write_b128 v7, v[26:29] offset:{L_S + tau*8192}")
    A("s_waitcnt lgkmcnt(0)")


def switch_stream(A, srd_base, off_sreg):
    A(f"s_mov_b32 s52, s{srd_base}\ns_mov_b32 s53, s{srd_base+1}\ns_mov_b32 s54, s{srd_base+2}\ns_mov_b32 s55, s{srd_base+3}")
    A(f"s_mov_b32 s62, s{off_sreg}")


def grab_id(A, r):
    A(f"v_mov_b32 v{r}, 1\nv_mov_b32 v6, 0\ns_mov_b64 exec, 1")
    A(f"buffer_atomic_add v{r}, v6, s[48:51], s11 offen sc0 sc1")
    A("s_mov_b64 exec, -1")


def score_loads(A, idreg, rset):
    A(f"s_lshr_b32 s64, s{idreg}, 3\ns_lshl_b32 s64, s64, 13\ns_and_b32 s65, s{idreg}, 7\ns_lshl_b32 s65, s65, 6")
    A("s_add_u32 s64, s64, s65\ns_add_u32 s64, s64, s9")
    for k in range(4):
        A(f"buffer_load_dwordx4 v[{rset+4*k}:{rset+4*k+3}], v29, s[48:51], s64 offen offset:{16*k} sc0 sc1")


def hooks(A, tau, name):
    A(f"s_cmp_eq_u32 s59, 0\ns_cbranch_scc0 L_{name}_hx")
    A(f"s_cmp_eq_u32 s63, 0\ns_cbranch_scc0 L_{name}_a")
    wg_publish_payload(A, tau)
    if tau == 1:
        A("v_mov_b32 v6, 0\nbuffer_load_dword v127, v6, s[44:47], 0 offen offset:160 sc0 sc1")
    A(f"s_branch L_{name}_hx")
    A.label(f"L_{name}_a")
    A(f"s_cmp_eq_u32 s63, 1\ns_cbranch_scc0 L_{name}_b")
    flag_add(A, tau)
    if tau == 1:
        A.label("L_zf")
        A("v_readfirstlane_b32 s64, v127\ns_nop 3\ns_cmp_eq_u32 s64, 1\ns_cbranch_scc1 L_zf_ok\ns_sleep 8")
        A("v_mov_b32 v6, 0\nbuffer_load_dword v127, v6, s[44:47], 0 offen offset:160 sc0 sc1\ns_waitcnt vmcnt(0)\ns_branch L_zf")
        A.label("L_zf_ok")
        grab_id(A, 122)
    A(f"s_branch L_{name}_hx")
    A.label(f"L_{name}_b")
    A(f"s_cmp_eq_u32 s63, 2\ns_cbranch_scc0 L_{name}_c")
    poll_issue(A, tau)
    if tau == 1:
        grab_id(A, 123)
    A(f"s_branch L_{name}_hx")
    A.label(f"L_{name}_c")
    poll_check_and_payload(A, tau, name)
    A.label(f"L_{name}_hx")


def gen_attn(A):
    A.raw(".globl attn_kernel\n.p2align 8\n.type attn_kernel,@function\nattn_kernel:")
    A("s_cmp_ge_u32 s2, 256\ns_cbranch_scc1 L_endA")
    A("s_load_dwordx8 s[8:15], s[0:1], 0")
    A("s_load_dwordx2 s[16:17], s[0:1], 32")
    A("s_load_dwordx4 s[20:23], s[0:1], 88")
    A("v_and_b32 v1, 63, v0\nv_lshrrev_b32 v5, 6, v0\ns_nop 0\nv_readfirstlane_b32 s59, v5")
    A("s_and_b32 s64, s2, 1\ns_lshr_b32 s56, s2, 4\ns_lshl_b32 s56, s56, 1\ns_add_u32 s56, s56, s64")
    A("s_bfe_u32 s57, s2, 0x10003\ns_bfe_u32 s58, s2, 0x20001")
    A("v_mul_u32_u24 v2, 12, v1")
    A(f"s_mov_b32 s82, {SCALE:#x}\ns_mov_b32 s83, {LOG2E:#x}")
    A("s_mov_b32 s80, 0x11111111\ns_mov_b32 s81, 0x11111111")
    A("s_lshl_b32 s65, s57, 6\ns_add_u32 s65, s65, s56\ns_add_u32 s66, s65, 32")
    A("s_mul_i32 s67, s58, 786432\ns_mul_i32 s68, s59, 768\ns_add_u32 s67, s67, s68")
    A("s_mul_i32 s60, s65, 3145728\ns_add_u32 s60, s60, s67")
    A("s_add_u32 s61, s60, 100663296")
    A("s_lshl_b32 s68, s58, 3")
    A(f"s_lshl_b32 s74, s65, 7\ns_add_u32 s74, s74, {WS_STATS}\ns_add_u32 s75, s74, 4096")
    A("s_add_u32 s72, s74, s68\ns_add_u32 s73, s75, s68")
    A("s_lshr_b32 s76, s65, 2\ns_lshl_b32 s76, s76, 2\ns_add_u32 s77, s76, 32")
    A("s_and_b32 s78, s56, 3\ns_lshl_b32 s78, s78, 3\ns_lshl_b32 s79, 1, s78")
    A("s_waitcnt lgkmcnt(0)")
    stamp(A)
    srd(A, 24, 8, 9, 5120)
    srd(A, 28, 10, 11, KV_BYTES)
    srd(A, 32, 12, 13, KV_BYTES)
    srd(A, 36, 14, 15, W_BYTES)
    srd(A, 40, 16, 17, W_BYTES)
    srd(A, 44, 20, 21, 256)
    srd(A, 48, 22, 23, WS_SIZE)
    A("s_mul_i32 s8, s66, 3145728\ns_mul_i32 s64, s59, 768\ns_add_u32 s8, s8, s64")
    A("s_lshl_b32 s64, s56, 1\ns_add_u32 s64, s64, s57")
    A(f"s_lshl_b32 s9, s64, 15\ns_lshl_b32 s68, s59, 10\ns_add_u32 s9, s9, s68\ns_add_u32 s9, s9, {WS_SCG}")
    A("s_lshl_b32 s68, s58, 13\ns_add_u32 s10, s9, s68")
    A(f"s_lshl_b32 s11, s64, 7\ns_add_u32 s11, s11, {WS_CTR}")
    A("s_cmp_eq_u32 s2, 0\ns_cbranch_scc0 L_nozero\ns_cmp_eq_u32 s59, 7\ns_cbranch_scc0 L_nozero")
    A("v_mov_b32 v8, 0\nv_mov_b32 v9, 0\nv_mov_b32 v10, 0\nv_mov_b32 v11, 0\nv_lshlrev_b32 v5, 4, v1")
    for i in range(10):
        A(f"buffer_store_dwordx4 v[8:11], v5, s[48:51], 0 offen offset:{i*1024 if i < 4 else 0} sc0 sc1" if i < 4 else
          f"s_mov_b32 s64, {WS_HACC + i*1024}\nbuffer_store_dwordx4 v[8:11], v5, s[48:51], s64 offen sc0 sc1")
    for i in range(10):
        A(f"s_mov_b32 s64, {WS_YACC + i*1024}\nbuffer_store_dwordx4 v[8:11], v5, s[48:51], s64 offen sc0 sc1")
    for i in range(8):
        A(f"s_mov_b32 s64, {WS_CTR + i*1024}\nbuffer_store_dwordx4 v[8:11], v5, s[48:51], s64 offen sc0 sc1")
    A.label("L_nozero")
    A("v_lshrrev_b32 v5, 4, v1")
    A("v_bfe_u32 v6, v1, 2, 2")
    A("v_and_b32 v7, 1, v6\nv_lshlrev_b32 v7, 1, v7\nv_lshrrev_b32 v6, 1, v6\nv_add_u32 v6, v6, v7")
    A("v_lshlrev_b32 v6, 1, v6\nv_and_b32 v7, 1, v5\nv_add_u32 v6, v6, v7")
    A("v_lshrrev_b32 v5, 1, v5")
    A("v_lshlrev_b32 v5, 9, v5\nv_lshlrev_b32 v6, 2, v6\nv_add_u32 v3, v5, v6")
    A("s_lshl_b32 s64, s59, 10\nv_add_u32 v3, s64, v3")
    A("v_lshlrev_b32 v7, 4, v1\nv_add_u32 v7, s64, v7")
    A(f"v_mov_b32 v4, {NINF:#x}")
    A("v_lshrrev_b32 v5, 5, v1\nv_mul_u32_u24 v5, 12288, v5\nv_and_b32 v6, 31, v1\nv_mul_u32_u24 v6, 12, v6\nv_add_u32 v26, v5, v6")
    A("s_mul_i32 s69, s56, 384\ns_mul_i32 s68, s59, 24576\ns_add_u32 s69, s69, s68")
    A("s_cmp_lt_u32 s59, 2\ns_cbranch_scc0 L_ln_done")
    A("s_lshl_b32 s68, s57, 1\ns_add_u32 s64, s59, s68\ns_mul_i32 s64, s64, 1280")
    A("v_lshlrev_b32 v5, 4, v1\nv_lshlrev_b32 v6, 2, v1")
    A("buffer_load_dwordx4 v[28:31], v5, s[24:27], s64 offen")
    A("buffer_load_dword v25, v6, s[24:27], s64 offen offset:1024")
    A("s_waitcnt vmcnt(0)")
    for e in range(4):
        A(f"v_lshlrev_b32 v{8+2*e}, 16, v{28+e}\nv_and_b32 v{9+2*e}, 0xffff0000, v{28+e}")
    A("v_lshlrev_b32 v16, 16, v25\nv_and_b32 v17, 0xffff0000, v25")
    layernorm10(A, 8, 18)
    A("v_mov_b32 v6, 0")
    for e in range(10):
        A(f"v_cvt_pk_bf16_f32 v{8+e}, v{8+e}, v6")
    A("v_and_b32 v5, 1, v1\nv_mul_u32_u24 v5, 1280, v5\nv_lshrrev_b32 v6, 1, v1\nv_lshlrev_b32 v6, 2, v6\nv_add_u32 v5, v5, v6")
    A("s_mul_i32 s64, s59, 2560\nv_add_u32 v5, s64, v5")
    for e in range(8):
        A(f"ds_write_b32 v5, v{8+e} offset:{L_XNP + e*160}")
    A("v_and_b32 v5, 7, v1\nv_mul_u32_u24 v5, 320, v5\nv_lshrrev_b32 v6, 3, v1\nv_lshlrev_b32 v6, 2, v6\nv_add_u32 v5, v5, v6")
    A("v_add_u32 v5, s64, v5")
    for e in range(2):
        A(f"ds_write_b32 v5, v{16+e} offset:{L_XNP + 128 + e*160}")
    A("s_branch L_ln_done2")
    A.label("L_ln_done")
    A.label("L_ln_done2")
    for j in range(40):
        w = WQR(j)
        A(f"buffer_load_dwordx3 v[{w}:{w+2}], v26, s[36:39], s69 offen\ns_add_u32 s69, s69, {8*24576}")
    stamp(A)
    A("s_waitcnt lgkmcnt(0)\ns_barrier")
    switch_stream(A, 28, 60)
    for j in range(16):
        stream_issue(A, j)
    stamp(A)
    A("s_waitcnt vmcnt(16)")
    for i in range(12):
        A(f"v_mov_b32 v{14+i}, 0")
    A("v_lshrrev_b32 v5, 5, v1\ns_lshl_b32 s64, s59, 1\nv_add_u32 v5, s64, v5\nv_mul_u32_u24 v27, 160, v5")
    A("s_waitcnt vmcnt(16)")
    stamp(A)
    A("s_cmp_eq_u32 s2, 0\ns_cbranch_scc0 L_nozf\ns_cmp_eq_u32 s59, 7\ns_cbranch_scc0 L_nozf")
    A("v_mov_b32 v5, 1\nv_mov_b32 v6, 0\ns_mov_b64 exec, 1")
    A("buffer_store_dword v5, v6, s[44:47], 0 offen offset:160 sc0 sc1")
    A("s_mov_b64 exec, -1")
    A.label("L_nozf")
    for c in range(10):
        A(f"ds_read_b128 v[8:11], v27 offset:{L_XNP + c*16}")
        A(f"ds_read_b128 v[28:31], v27 offset:{L_XNP + 2560 + c*16}")
        A("s_waitcnt lgkmcnt(0)")
        for jj in range(4):
            j = c * 4 + jj
            w = WQR(j)
            for tau in range(2):
                p = (8 if tau == 0 else 28) + jj
                a = 14 + 6 * tau
                t = 5 + tau
                A(f"v_lshlrev_b32 v{t}, 16, v{p}")
                for e in range(3):
                    A(f"v_dot2c_f32_bf16 v{a+2*e}, v{w+e}, v{p}")
                for e in range(3):
                    A(f"v_dot2c_f32_bf16 v{a+2*e+1}, v{w+e}, v{t}")
            if j >= 24:
                stream_issue(A, 16 + j - 24)
    stamp(A)
    cross_wave_reduce_192(A, "q")
    A("v_and_b32 v5, 31, v1\nv_mul_u32_u24 v5, 12, v5")
    for tau in range(2):
        for e in range(3):
            A(f"ds_read_b32 v{8+3*tau+e}, v5 offset:{L_QB + tau*384 + e*4}")
    A("s_waitcnt lgkmcnt(0)")
    if DEBUG:
        A("s_cmp_eq_u32 s59, 0\ns_cbranch_scc0 L_dbgq")
        A(f"s_lshl_b32 s64, s2, 12\ns_add_u32 s64, s64, {WS_DBG}\nv_lshlrev_b32 v5, 5, v1")
        for i in range(6):
            A(f"buffer_store_dword v{8+i}, v5, s[48:51], s64 offen offset:{i*4}")
        A.label("L_dbgq")

    stamp(A)
    for tau in range(2):
        A("s_mov_b32 s63, 0")
        A.label(f"L_K{tau}")
        A("s_waitcnt lgkmcnt(0)\ns_barrier")
        A(f"s_cmp_eq_u32 s63, 3\ns_cbranch_scc0 L_K{tau}_h3")
        if tau == 0:
            switch_stream(A, 28, 61)
        else:
            switch_stream(A, 32, 60)
        A.label(f"L_K{tau}_h3")
        if tau == 1:
            hooks(A, 0, "K1")
        for g in range(4):
            for i in range(8):
                k_slot(A, 8 * g + i, 8 + 3 * tau)
            k_group_reduce(A, g, tau)
        A("v_add_u32 v3, 128, v3")
        A(f"s_add_u32 s63, s63, 1\ns_cmp_lt_u32 s63, 4\ns_cbranch_scc1 L_K{tau}")
        A("v_subrev_u32 v3, 512, v3")
        local_stats(A, tau)
        stamp(A)
    A("s_cmp_eq_u32 s59, 0\ns_cbranch_scc0 L_gs0")
    global_stats(A, 0)
    A.label("L_gs0")
    for i in range(12):
        A(f"v_mov_b32 v{14+i}, 0")
    A(f"ds_read_b128 v[26:29], v7 offset:{L_S + 8192}\nv_lshlrev_b32 v5, 4, v1\ns_waitcnt lgkmcnt(0)")
    A("buffer_store_dwordx4 v[26:29], v5, s[48:51], s10 offen sc0 sc1")
    A("v_lshrrev_b32 v5, 5, v1\nv_lshlrev_b32 v5, 9, v5\ns_lshl_b32 s64, s59, 10\nv_add_u32 v3, s64, v5")
    A("s_mov_b32 s63, 0")
    A.label("L_V0")
    A("s_waitcnt lgkmcnt(0)\ns_barrier")
    A("s_cmp_eq_u32 s63, 0\ns_cbranch_scc0 L_V0_h0")
    scores_to_p(A, 0)
    A.label("L_V0_h0")
    A("s_cmp_eq_u32 s63, 3\ns_cbranch_scc0 L_V0_h3")
    switch_stream(A, 32, 61)
    A("v_lshrrev_b32 v29, 5, v1\nv_lshlrev_b32 v29, 9, v29")
    A("s_lshl_b32 s12, s58, 3\ns_add_u32 s13, s12, 1")
    score_loads(A, 12, 64)
    score_loads(A, 13, 80)
    A.label("L_V0_h3")
    hooks(A, 1, "V0")
    for c in range(8):
        A(f"ds_read_b128 v[{32+4*c}:{35+4*c}], v3 offset:{L_S + c*16}")
    A("s_waitcnt lgkmcnt(0)")
    for j in range(D):
        v_slot(A, j, 14)
    A("v_add_u32 v3, 128, v3")
    A("s_add_u32 s63, s63, 1\ns_cmp_lt_u32 s63, 4\ns_cbranch_scc1 L_V0")
    A("s_cmp_eq_u32 s59, 0\ns_cbranch_scc0 L_gs1")
    global_stats(A, 1)
    A.label("L_gs1")
    stamp(A)
    A("s_mov_b32 s15, 0")
    A.label("L_V1")
    for par in range(2):
        A(f"s_cmp_eq_u32 s59, 0\ns_cbranch_scc0 L_V1_w{par}")
        A(f"s_waitcnt vmcnt(41)\nv_readfirstlane_b32 s64, v{122+par}\ns_nop 3")
        A("s_mul_i32 s65, s64, 43\ns_lshr_b32 s65, s65, 8\ns_mul_i32 s68, s65, 6\ns_sub_u32 s68, s64, s68\ns_lshl_b32 s65, s65, 3\ns_add_u32 s65, s65, s68\ns_add_u32 s65, s65, 2")
        A("s_cmp_lt_u32 s64, 24\ns_cselect_b32 s65, s65, 32")
        A(f"v_mov_b32 v5, s65\nv_mov_b32 v6, 0\ns_mov_b64 exec, 1\nds_write_b32 v6, v5 offset:{L_IDS + 4*par}\ns_mov_b64 exec, -1")
        grab_id(A, 122 + par)
        A.label(f"L_V1_w{par}")
        A("s_waitcnt lgkmcnt(0)\ns_barrier")
        A("s_cmp_ge_u32 s12, 32\ns_cbranch_scc1 L_V1_done")
        A(f"v_mov_b32 v6, 0\nds_read_b32 v5, v6 offset:{L_IDS + 4*par}")
        A("s_cmp_eq_u32 s15, 0\ns_cbranch_scc0 L_V1_ng%d" % par)
        A(f"ds_read_b64 v[30:31], v6 offset:{L_GST + 8}")
        A.label("L_V1_ng%d" % par)
        A("s_waitcnt vmcnt(36) lgkmcnt(0)\nv_readfirstlane_b32 s14, v5")
        R = 64 + 16 * par
        for e in range(16):
            A(f"v_sub_f32 v{32+e}, v{R+e}, v30")
        for e in range(16):
            A(f"v_mul_f32 v{32+e}, s83, v{32+e}")
        for e in range(16):
            A(f"v_exp_f32 v{32+e}, v{32+e}")
        A("v_mov_b32 v6, 0")
        for e in range(16):
            A(f"v_mul_f32 v{32+e}, v{32+e}, v31")
        for e in range(16):
            A(f"v_cvt_pk_bf16_f32 v{32+e}, v{32+e}, v6")
        score_loads(A, 14, R)
        A("s_mul_i32 s62, s14, 98304\ns_add_u32 s62, s62, s8")
        A(f"s_cmp_lt_u32 s14, 32\ns_cselect_b32 s54, {KV_BYTES}, 0")
        for jj in range(16):
            v_slot(A, 16 * par + jj, 20, p=32 + jj)
        A("s_mov_b32 s12, s13\ns_mov_b32 s13, s14\ns_add_u32 s15, s15, 1")
    A("s_branch L_V1")
    A.label("L_V1_done")
    A("s_waitcnt vmcnt(0)")
    stamp(A)
    A("s_mul_i32 s64, s56, 192\ns_mul_i32 s68, s59, 24\ns_add_u32 s64, s64, s68\ns_mul_i32 s64, s64, 1280")
    A("v_lshlrev_b32 v5, 4, v1\nv_lshlrev_b32 v6, 2, v1")
    for ii in range(24):
        A(f"buffer_load_dwordx4 v[{32+4*ii}:{35+4*ii}], v5, s[40:43], s64 offen")
        A(f"buffer_load_dword v{128+ii}, v6, s[40:43], s64 offen offset:1024")
        A("s_add_u32 s64, s64, 1280")
    cross_wave_reduce_192(A, "o")
    if DEBUG:
        A(f"v_lshlrev_b32 v5, 2, v0\nv_cmp_gt_u32 vcc, 384, v0\ns_and_saveexec_b64 s[64:65], vcc")
        A(f"ds_read_b32 v6, v5 offset:{L_OV}\ns_waitcnt lgkmcnt(0)")
        A(f"s_lshl_b32 s68, s2, 12\ns_add_u32 s68, s68, {WS_DBG + 2048}")
        A("buffer_store_dword v6, v5, s[48:51], s68 offen")
        A("s_mov_b64 exec, -1")
    stamp(A)
    A("s_mul_i32 s64, s59, 192\nv_mov_b32 v7, s64")
    for c in range(12):
        A(f"ds_read_b128 v[{176+4*c}:{179+4*c}], v7 offset:{L_OV + c*16}")
    for i in range(20):
        A(f"v_mov_b32 v{224+i}, 0")
    A("s_waitcnt vmcnt(0) lgkmcnt(0)")
    for ii in range(24):
        o0 = 176 + 2 * ii
        for e in range(5):
            w = (32 + 4 * ii + e) if e < 4 else (128 + ii)
            A(f"v_lshlrev_b32 v5, 16, v{w}\nv_and_b32 v6, 0xffff0000, v{w}")
            A(f"v_fmac_f32 v{224+2*e}, v5, v{o0}\nv_fmac_f32 v{225+2*e}, v6, v{o0}")
            A(f"v_fmac_f32 v{234+2*e}, v5, v{o0+1}\nv_fmac_f32 v{235+2*e}, v6, v{o0+1}")
    A("s_mul_i32 s64, s59, 5120\nv_lshlrev_b32 v5, 5, v1\nv_add_u32 v5, s64, v5\nv_lshlrev_b32 v6, 3, v1\nv_add_u32 v6, s64, v6")
    for tau in range(2):
        A(f"ds_write_b128 v5, v[{224+10*tau}:{227+10*tau}] offset:{L_OUTP + tau*2560}")
        A(f"ds_write_b128 v5, v[{228+10*tau}:{231+10*tau}] offset:{L_OUTP + tau*2560 + 16}")
        A(f"ds_write_b64 v6, v[{232+10*tau}:{233+10*tau}] offset:{L_OUTP + tau*2560 + 2048}")
    A("s_waitcnt lgkmcnt(0)\ns_barrier")
    A(f"s_mul_i32 s64, s57, 5120\ns_add_u32 s64, s64, {WS_HACC}\nv_lshlrev_b32 v5, 2, v0")
    for k in range(3):
        for w in range(8):
            A(f"ds_read_b32 v{8+8*k+w}, v5 offset:{L_OUTP + k*2048 + w*5120}")
    A("s_waitcnt lgkmcnt(0)")
    for k in range(3):
        r = 8 + 8 * k
        for w in range(4):
            A(f"v_add_f32 v{r+w}, v{r+w}, v{r+4+w}")
        A(f"v_add_f32 v{r}, v{r}, v{r+2}\nv_add_f32 v{r+1}, v{r+1}, v{r+3}\nv_add_f32 v{r}, v{r}, v{r+1}")
    A("buffer_atomic_add_f32 v8, v5, s[48:51], s64 offen")
    A("buffer_atomic_add_f32 v16, v5, s[48:51], s64 offen offset:2048")
    A("v_cmp_gt_u32 vcc, 256, v0\ns_and_saveexec_b64 s[66:67], vcc\ns_cbranch_execz L_endA2")
    A("s_add_u32 s64, s64, 4096\ns_nop 3")
    A("buffer_atomic_add_f32 v24, v5, s[48:51], s64 offen")
    A.label("L_endA2")
    A("s_mov_b64 exec, -1")
    stamp(A)
    stamp_dump(A, WS_DBG + 0x200000)
    A.label("L_endA")
    A("s_endpgm")


def layernorm10(A, x, t):
    s, u, m, vv, r = t, t + 1, t + 2, t + 3, t + 4
    A(f"v_add_f32 v{s}, v{x}, v{x+1}")
    for e in range(2, 10):
        A(f"v_add_f32 v{s}, v{s}, v{x+e}")
    wave_reduce(A, "add", s, u)
    A(f"v_mul_f32 v{m}, {INV640:#x}, v{s}")
    A(f"v_sub_f32 v{u}, v{x}, v{m}\nv_mul_f32 v{s}, v{u}, v{u}")
    for e in range(1, 10):
        A(f"v_sub_f32 v{u}, v{x+e}, v{m}\nv_fmac_f32 v{s}, v{u}, v{u}")
    wave_reduce(A, "add", s, u)
    A(f"v_mul_f32 v{vv}, {INV640:#x}, v{s}")
    rne(A, m)
    rne(A, vv)
    A(f"v_add_f32 v{vv}, {EPS:#x}, v{vv}")
    rne(A, vv)
    A(f"v_sqrt_f32 v{vv}, v{vv}\ns_nop 0")
    rne(A, vv)
    A(f"v_rcp_f32 v{r}, v{vv}\ns_nop 0")
    for e in range(10):
        A(f"v_sub_f32 v{x+e}, v{x+e}, v{m}")
        rne(A, x + e)
        A(f"v_mul_f32 v{s}, v{x+e}, v{r}")
        A(f"v_fma_f32 v{u}, -v{s}, v{vv}, v{x+e}")
        A(f"v_fma_f32 v{x+e}, v{u}, v{r}, v{s}")
        rne(A, x + e)


def cross_wave_reduce_192(A, kind):
    A("v_lshrrev_b32 v5, 5, v1\ns_lshl_b32 s64, s59, 1\nv_add_u32 v5, s64, v5\nv_mul_u32_u24 v5, 768, v5")
    A("v_and_b32 v6, 31, v1\nv_mul_u32_u24 v6, 24, v6\nv_add_u32 v5, v5, v6")
    for tau in range(2):
        for e in range(3):
            A(f"ds_write_b64 v5, v[{14+6*tau+2*e}:{15+6*tau+2*e}] offset:{L_QR + tau*12288 + e*8}")
    A("s_waitcnt lgkmcnt(0)\ns_barrier")
    A("v_cmp_gt_u32 vcc, 384, v0\ns_and_saveexec_b64 s[64:65], vcc")
    A(f"s_cbranch_execz L_cw_{kind}")
    A("v_cmp_le_u32 vcc, 192, v0\nv_mov_b32 v6, 0\nv_mov_b32 v5, 11520\ns_nop 0\nv_cndmask_b32 v6, v6, v5, vcc")
    A("v_lshlrev_b32 v5, 2, v0\nv_add_u32 v5, v5, v6")
    T = 112 if kind == "q" else 240
    for s in range(16):
        A(f"ds_read_b32 v{T+s}, v5 offset:{L_QR + s*768}")
    A("s_waitcnt lgkmcnt(0)")
    for s in range(8):
        A(f"v_add_f32 v{T+s}, v{T+s}, v{T+8+s}")
    for s in range(4):
        A(f"v_add_f32 v{T+s}, v{T+s}, v{T+4+s}")
    A(f"v_add_f32 v{T}, v{T}, v{T+2}\nv_add_f32 v{T+1}, v{T+1}, v{T+3}\nv_add_f32 v{T}, v{T}, v{T+1}")
    if kind == "q":
        A(f"v_cvt_pk_bf16_f32 v{T}, v{T}, v{T}\nv_lshlrev_b32 v5, 1, v0")
        A(f"ds_write_b16 v5, v{T} offset:{L_QB}")
    else:
        A(f"v_lshlrev_b32 v5, 3, v0\nv_mov_b32 v6, 0\nv_mov_b32 v{T+1}, 1532\nv_cndmask_b32 v6, v6, v{T+1}, vcc\nv_sub_u32 v5, v5, v6")
        A(f"ds_write_b32 v5, v{T} offset:{L_OV}")
    A.label(f"L_cw_{kind}")
    A("s_mov_b64 exec, -1")
    A("s_waitcnt lgkmcnt(0)\ns_barrier")


def kd(name, vgpr, sgpr=100):
    return f""".amdhsa_kernel {name}
  .amdhsa_next_free_vgpr {vgpr}
  .amdhsa_next_free_sgpr {sgpr}
  .amdhsa_accum_offset {vgpr}
  .amdhsa_group_segment_fixed_size 0
  .amdhsa_kernarg_size 104
  .amdhsa_user_sgpr_count 2
  .amdhsa_user_sgpr_kernarg_segment_ptr 1
  .amdhsa_system_sgpr_workgroup_id_x 1
.end_amdhsa_kernel
"""


HEADER = """; Kernarg layout for this problem (104 bytes, ptrs only, base s[0:1]):
;   offset  88: d_debug   256 bytes
"""


def main():
    global DEBUG, TIMING
    out = sys.argv[1] if len(sys.argv) > 1 else f"cdna_kernels/{NAME}.s"
    DEBUG = len(sys.argv) > 2 and sys.argv[2] == "debug"
    TIMING = len(sys.argv) > 2 and sys.argv[2] == "timing"
    only_a = len(sys.argv) > 3 and sys.argv[3] == "A"
    A = Asm()
    A.raw(HEADER.rstrip())
    A.raw(f"; @launch kernel=attn_kernel grid=(256,1,1) block=(512,1,1) lds={L_END_A}")
    if not only_a:
        import gen_mlp
        A.raw(gen_mlp.launch_line())
    A.raw('.amdgcn_target "amdgcn-amd-amdhsa--gfx950"\n.text')
    gen_attn(A)
    if not only_a:
        gen_mlp.gen_mlp(A, DEBUG)
    A.raw('.section .rodata,"a"\n.p2align 6')
    A.raw(kd("attn_kernel", 256))
    if not only_a:
        A.raw(".p2align 6")
        A.raw(gen_mlp.kd())
    open(out, "w").write(A.text())


if __name__ == "__main__":
    import gen as _g
    _g.main()
```

```python
import sys

NAME = "sequential_preLN__mha_block_cached__moe_arch_mod__decode"
DEBUG = False

KV_BYTES = 4 * 32 * 8192 * 192 * 2
W_BYTES = 640 * 6144 * 2

WS_HACC = 0x0000
WS_YACC = 0x4000
WS_STATS = 0x8000
WS_CTR = 0x10000
WS_SCG = 0x20000
WS_DBG = 0x400000
WS_SIZE = 0x1000000

L_S = 0
L_XNP = 16384
L_QR = 21504
L_QB = 46080
L_OV = 46848
L_WST = 48384
L_GST = 48512
L_IDS = 48576
L_OUTP = 0
L_END_A = 48640

SCALE = 0x3d93cd3a
LOG2E = 0x3fb8aa3b
INV640 = 0x3acccccd
EPS = 0x3727c5ac
NINF = 0xff800000


class Asm:
    def __init__(self):
        self.L = []

    def __call__(self, s):
        for line in s.split("\n"):
            line = line.strip()
            if line:
                self.L.append("  " + line)

    def label(self, l):
        self.L.append(l + ":")

    def raw(self, s):
        self.L.append(s)

    def text(self):
        return "\n".join(self.L) + "\n"


def srd(A, d, lo, hi, size):
    A(f"s_mov_b32 s{d}, s{lo}\ns_mov_b32 s{d+1}, s{hi}\ns_mov_b32 s{d+2}, {size}\ns_mov_b32 s{d+3}, 0x00020000")


def rne(A, r):
    A(f"v_cvt_pk_bf16_f32 v{r}, v{r}, v{r}\nv_lshlrev_b32 v{r}, 16, v{r}")


def wave_reduce(A, op, r, t, full=True):
    for dpp in ["quad_perm:[1,0,3,2]", "quad_perm:[2,3,0,1]", "row_half_mirror", "row_mirror"]:
        A(f"s_nop 1\nv_{op}_f32_dpp v{r}, v{r}, v{r} {dpp} row_mask:0xf bank_mask:0xf")
    A(f"v_mov_b32 v{t}, v{r}\ns_nop 1\nv_permlane16_swap_b32 v{r}, v{t}\ns_nop 1\nv_{op}_f32 v{r}, v{r}, v{t}")
    if full:
        A(f"v_mov_b32 v{t}, v{r}\ns_nop 1\nv_permlane32_swap_b32 v{r}, v{t}\ns_nop 1\nv_{op}_f32 v{r}, v{r}, v{t}")


TIMING = False
_stamp_n = [0]
def stamp(A, dup=False):
    if not TIMING:
        return
    n = _stamp_n[0]; _stamp_n[0] += 1
    if dup:
        n -= 1; _stamp_n[0] -= 1
    assert n < 12, n
    A(f"s_memrealtime s[96:97]\ns_waitcnt lgkmcnt(0)\ns_mov_b32 s{84+n}, s96")


def stamp_dump(A, base):
    if not TIMING:
        return
    A(f"s_lshl_b32 s98, s2, 4\ns_add_u32 s98, s98, s59\ns_lshl_b32 s98, s98, 6\ns_add_u32 s98, s98, {base}")
    A("v_mov_b32 v6, 0\ns_mov_b64 exec, 1")
    for n in range(_stamp_n[0]):
        A(f"v_mov_b32 v5, s{84+n}\nbuffer_store_dword v5, v6, s[48:51], s98 offen offset:{4*n}")
    A("s_mov_b64 exec, -1")
    _stamp_n[0] = 0


SB = 128
D = 32


def WQR(j):
    return 32 + 4 * j if j < 24 else SB + 64 + 4 * (j - 24)


def stream_issue(A, j, nt=True):
    r = SB + 4 * j
    A(f"buffer_load_dwordx3 v[{r}:{r+2}], v2, s[52:55], s62 offen nt")
    A("s_add_u32 s62, s62, 6144")


def k_slot(A, j, q, reissue=True, wait=D - 1):
    r = SB + 4 * j
    A(f"s_waitcnt vmcnt({wait})")
    A(f"v_dot2_f32_bf16 v{r+3}, v{r}, v{q}, 0")
    A(f"v_dot2_f32_bf16 v{r+3}, v{r+1}, v{q+1}, v{r+3}")
    A(f"v_dot2_f32_bf16 v{r+3}, v{r+2}, v{q+2}, v{r+3}")
    if reissue:
        stream_issue(A, j)


def k_group_reduce(A, g, tau):
    P = [SB + 4 * (8 * g + i) + 3 for i in range(8)]
    A("s_nop 1")
    for k in range(4):
        A(f"v_permlane16_swap_b32 v{P[2*k]}, v{P[2*k+1]}")
    A("s_nop 0")
    for k in range(4):
        A(f"v_add_f32 v{P[2*k]}, v{P[2*k]}, v{P[2*k+1]}")
    B = [P[0], P[2], P[4], P[6]]
    A("s_nop 0")
    A(f"v_add_f32_dpp v{B[0]}, v{B[0]}, v{B[0]} row_ror:8 row_mask:0xf bank_mask:0x3")
    A(f"v_add_f32_dpp v{B[2]}, v{B[2]}, v{B[2]} row_ror:8 row_mask:0xf bank_mask:0x3")
    A(f"v_add_f32_dpp v{B[0]}, v{B[1]}, v{B[1]} row_ror:8 row_mask:0xf bank_mask:0xc")
    A(f"v_add_f32_dpp v{B[2]}, v{B[3]}, v{B[3]} row_ror:8 row_mask:0xf bank_mask:0xc")
    A("s_nop 1")
    A(f"v_add_f32_dpp v{B[0]}, v{B[0]}, v{B[0]} row_half_mirror row_mask:0xf bank_mask:0x5")
    A(f"v_add_f32_dpp v{B[0]}, v{B[2]}, v{B[2]} row_half_mirror row_mask:0xf bank_mask:0xa")
    A("s_nop 1")
    A(f"v_add_f32_dpp v{B[0]}, v{B[0]}, v{B[0]} quad_perm:[1,0,3,2] row_mask:0xf bank_mask:0xf")
    A("s_nop 1")
    A(f"v_add_f32_dpp v{B[0]}, v{B[0]}, v{B[0]} quad_perm:[2,3,0,1] row_mask:0xf bank_mask:0xf")
    r = B[0]
    A(f"v_cvt_pk_bf16_f32 v{r}, v{r}, v{r}")
    A(f"v_lshlrev_b32 v{r}, 16, v{r}")
    A(f"v_mul_f32 v{r}, s82, v{r}")
    A(f"v_cvt_pk_bf16_f32 v{r}, v{r}, v{r}")
    A(f"v_lshlrev_b32 v{r}, 16, v{r}")
    A(f"v_max_f32 v4, v4, v{r}")
    A("s_mov_b64 exec, s[80:81]")
    A(f"ds_write_b32 v3, v{r} offset:{L_S + tau*8192 + g*32}")
    A("s_mov_b64 exec, -1")


def v_slot(A, j, acc, reissue=True, wait=D - 1, p=None):
    r = SB + 4 * j
    if p is None:
        p = 32 + j
    t = 26 + (j & 1)
    A(f"s_waitcnt vmcnt({wait})")
    A(f"v_lshlrev_b32 v{t}, 16, v{p}")
    A(f"v_dot2c_f32_bf16 v{acc+0}, v{r}, v{p}")
    A(f"v_dot2c_f32_bf16 v{acc+2}, v{r+1}, v{p}")
    A(f"v_dot2c_f32_bf16 v{acc+4}, v{r+2}, v{p}")
    A(f"v_dot2c_f32_bf16 v{acc+1}, v{r}, v{t}")
    A(f"v_dot2c_f32_bf16 v{acc+3}, v{r+1}, v{t}")
    A(f"v_dot2c_f32_bf16 v{acc+5}, v{r+2}, v{t}")
    if reissue:
        stream_issue(A, j)


def local_stats(A, tau):
    A("s_waitcnt lgkmcnt(0)")
    A(f"ds_read_b128 v[28:31], v7 offset:{L_S + tau*8192}")
    wave_reduce(A, "max", 4, 5)
    A("s_waitcnt lgkmcnt(0)")
    for e in range(4):
        A(f"v_sub_f32 v{28+e}, v{28+e}, v4")
    for e in range(4):
        A(f"v_mul_f32 v{28+e}, s83, v{28+e}")
    for e in range(4):
        A(f"v_exp_f32 v{28+e}, v{28+e}")
    A("s_nop 0")
    A("v_add_f32 v28, v28, v29\nv_add_f32 v30, v30, v31\nv_add_f32 v5, v28, v30")
    wave_reduce(A, "add", 5, 6)
    A("s_lshl_b32 s64, s59, 3\nv_mov_b32 v6, s64")
    A("s_mov_b64 exec, 1")
    A(f"ds_write_b64 v6, v[4:5] offset:{L_WST + tau*64}")
    A("s_mov_b64 exec, -1")
    A(f"v_mov_b32 v4, {NINF:#x}")


def combine8(A, m, l, n_full):
    A(f"v_mov_b32 v5, v{m}")
    for dpp in ["quad_perm:[1,0,3,2]", "quad_perm:[2,3,0,1]", "row_half_mirror"][:n_full]:
        A(f"s_nop 1\nv_max_f32_dpp v5, v5, v5 {dpp} row_mask:0xf bank_mask:0xf")
    A(f"v_sub_f32 v{m}, v{m}, v5\nv_mul_f32 v{m}, s83, v{m}\nv_exp_f32 v{m}, v{m}\ns_nop 0\nv_mul_f32 v{l}, v{l}, v{m}")
    for dpp in ["quad_perm:[1,0,3,2]", "quad_perm:[2,3,0,1]", "row_half_mirror"][:n_full]:
        A(f"s_nop 1\nv_add_f32_dpp v{l}, v{l}, v{l} {dpp} row_mask:0xf bank_mask:0xf")
    A(f"v_mov_b32 v{m}, v5")


def wg_publish_payload(A, tau):
    A("v_and_b32 v6, 7, v1\nv_lshlrev_b32 v6, 3, v6")
    A(f"ds_read_b64 v[30:31], v6 offset:{L_WST + tau*64}\ns_waitcnt lgkmcnt(0)")
    combine8(A, 30, 31, 3)
    A("v_mov_b32 v6, 0\ns_mov_b64 exec, 1")
    A(f"buffer_store_dwordx2 v[30:31], v6, s[48:51], s{72+tau} offen sc0 sc1")
    A("s_mov_b64 exec, -1")


def flag_add(A, tau):
    A("v_mov_b32 v6, 0\nv_mov_b32 v5, s79")
    A("s_mov_b64 exec, 1")
    A(f"buffer_atomic_add v5, v6, s[44:47], s{76+tau} offen sc1")
    A("s_mov_b64 exec, -1")


def poll_issue(A, tau):
    A("v_mov_b32 v6, 0")
    A(f"buffer_load_dword v126, v6, s[44:47], s{76+tau} offen sc0 sc1")


def poll_check_and_payload(A, tau, name):
    A("v_readfirstlane_b32 s64, v126")
    A("s_nop 3")
    A.label(f"L_chk_{name}")
    A("s_lshr_b32 s64, s64, s78\ns_and_b32 s64, s64, 0xff\ns_cmp_eq_u32 s64, 4")
    A(f"s_cbranch_scc1 L_ok_{name}")
    A("s_sleep 8")
    poll_issue(A, tau)
    A("s_waitcnt vmcnt(0)\nv_readfirstlane_b32 s64, v126\ns_nop 3")
    A(f"s_branch L_chk_{name}")
    A.label(f"L_ok_{name}")
    A("v_and_b32 v6, 3, v1\nv_lshlrev_b32 v6, 3, v6")
    A(f"buffer_load_dwordx2 v[124:125], v6, s[48:51], s{74+tau} offen sc0 sc1")


def global_stats(A, tau):
    combine8(A, 124, 125, 2)
    A("v_rcp_f32 v6, v125\ns_nop 0")
    A("v_fma_f32 v5, -v125, v6, 1.0\nv_fma_f32 v125, v5, v6, v6")
    A("v_mov_b32 v6, 0\ns_mov_b64 exec, 1")
    A(f"ds_write_b64 v6, v[124:125] offset:{L_GST + tau*8}")
    A("s_mov_b64 exec, -1")


def scores_to_p(A, tau):
    A("v_mov_b32 v6, 0")
    A(f"ds_read_b128 v[26:29], v7 offset:{L_S + tau*8192}")
    A(f"ds_read_b64 v[30:31], v6 offset:{L_GST + tau*8}")
    A("s_waitcnt lgkmcnt(0)")
    for e in range(4):
        A(f"v_sub_f32 v{26+e}, v{26+e}, v30")
    for e in range(4):
        A(f"v_mul_f32 v{26+e}, s83, v{26+e}")
    for e in range(4):
        A(f"v_exp_f32 v{26+e}, v{26+e}")
    A("s_nop 0")
    for e in range(4):
        A(f"v_mul_f32 v{26+e}, v{26+e}, v31")
    for e in range(4):
        A(f"v_cvt_pk_bf16_f32 v{26+e}, v{26+e}, v6")
    A(f"ds_write_b128 v7, v[26:29] offset:{L_S + tau*8192}")
    A("s_waitcnt lgkmcnt(0)")


def switch_stream(A, srd_base, off_sreg):
    A(f"s_mov_b32 s52, s{srd_base}\ns_mov_b32 s53, s{srd_base+1}\ns_mov_b32 s54, s{srd_base+2}\ns_mov_b32 s55, s{srd_base+3}")
    A(f"s_mov_b32 s62, s{off_sreg}")


def grab_id(A, r):
    A(f"v_mov_b32 v{r}, 1\nv_mov_b32 v6, 0\ns_mov_b64 exec, 1")
    A(f"buffer_atomic_add v{r}, v6, s[48:51], s11 offen sc0 sc1")
    A("s_mov_b64 exec, -1")


def score_loads(A, idreg, rset):
    A(f"s_lshr_b32 s64, s{idreg}, 3\ns_lshl_b32 s64, s64, 13\ns_and_b32 s65, s{idreg}, 7\ns_lshl_b32 s65, s65, 6")
    A("s_add_u32 s64, s64, s65\ns_add_u32 s64, s64, s9")
    for k in range(4):
        A(f"buffer_load_dwordx4 v[{rset+4*k}:{rset+4*k+3}], v29, s[48:51], s64 offen offset:{16*k} sc0 sc1")


def hooks(A, tau, name):
    A(f"s_cmp_eq_u32 s59, 0\ns_cbranch_scc0 L_{name}_hx")
    A(f"s_cmp_eq_u32 s63, 0\ns_cbranch_scc0 L_{name}_a")
    wg_publish_payload(A, tau)
    if tau == 1:
        A("v_mov_b32 v6, 0\nbuffer_load_dword v127, v6, s[44:47], 0 offen offset:160 sc0 sc1")
    A(f"s_branch L_{name}_hx")
    A.label(f"L_{name}_a")
    A(f"s_cmp_eq_u32 s63, 1\ns_cbranch_scc0 L_{name}_b")
    flag_add(A, tau)
    if tau == 1:
        A.label("L_zf")
        A("v_readfirstlane_b32 s64, v127\ns_nop 3\ns_cmp_eq_u32 s64, 1\ns_cbranch_scc1 L_zf_ok\ns_sleep 8")
        A("v_mov_b32 v6, 0\nbuffer_load_dword v127, v6, s[44:47], 0 offen offset:160 sc0 sc1\ns_waitcnt vmcnt(0)\ns_branch L_zf")
        A.label("L_zf_ok")
        grab_id(A, 122)
    A(f"s_branch L_{name}_hx")
    A.label(f"L_{name}_b")
    A(f"s_cmp_eq_u32 s63, 2\ns_cbranch_scc0 L_{name}_c")
    poll_issue(A, tau)
    if tau == 1:
        grab_id(A, 123)
    A(f"s_branch L_{name}_hx")
    A.label(f"L_{name}_c")
    poll_check_and_payload(A, tau, name)
    A.label(f"L_{name}_hx")


def gen_attn(A):
    A.raw(".globl attn_kernel\n.p2align 8\n.type attn_kernel,@function\nattn_kernel:")
    A("s_cmp_ge_u32 s2, 256\ns_cbranch_scc1 L_endA")
    A("s_load_dwordx8 s[8:15], s[0:1], 0")
    A("s_load_dwordx2 s[16:17], s[0:1], 32")
    A("s_load_dwordx4 s[20:23], s[0:1], 88")
    A("v_and_b32 v1, 63, v0\nv_lshrrev_b32 v5, 6, v0\ns_nop 0\nv_readfirstlane_b32 s59, v5")
    A("s_and_b32 s64, s2, 1\ns_lshr_b32 s56, s2, 4\ns_lshl_b32 s56, s56, 1\ns_add_u32 s56, s56, s64")
    A("s_bfe_u32 s57, s2, 0x10003\ns_bfe_u32 s58, s2, 0x20001")
    A("v_mul_u32_u24 v2, 12, v1")
    A(f"s_mov_b32 s82, {SCALE:#x}\ns_mov_b32 s83, {LOG2E:#x}")
    A("s_mov_b32 s80, 0x11111111\ns_mov_b32 s81, 0x11111111")
    A("s_lshl_b32 s65, s57, 6\ns_add_u32 s65, s65, s56\ns_add_u32 s66, s65, 32")
    A("s_mul_i32 s67, s58, 786432\ns_mul_i32 s68, s59, 768\ns_add_u32 s67, s67, s68")
    A("s_mul_i32 s60, s65, 3145728\ns_add_u32 s60, s60, s67")
    A("s_add_u32 s61, s60, 100663296")
    A("s_lshl_b32 s68, s58, 3")
    A(f"s_lshl_b32 s74, s65, 7\ns_add_u32 s74, s74, {WS_STATS}\ns_add_u32 s75, s74, 4096")
    A("s_add_u32 s72, s74, s68\ns_add_u32 s73, s75, s68")
    A("s_lshr_b32 s76, s65, 2\ns_lshl_b32 s76, s76, 2\ns_add_u32 s77, s76, 32")
    A("s_and_b32 s78, s56, 3\ns_lshl_b32 s78, s78, 3\ns_lshl_b32 s79, 1, s78")
    A("s_waitcnt lgkmcnt(0)")
    stamp(A)
    srd(A, 24, 8, 9, 5120)
    srd(A, 28, 10, 11, KV_BYTES)
    srd(A, 32, 12, 13, KV_BYTES)
    srd(A, 36, 14, 15, W_BYTES)
    srd(A, 40, 16, 17, W_BYTES)
    srd(A, 44, 20, 21, 256)
    srd(A, 48, 22, 23, WS_SIZE)
    A("s_mul_i32 s8, s66, 3145728\ns_mul_i32 s64, s59, 768\ns_add_u32 s8, s8, s64")
    A("s_lshl_b32 s64, s56, 1\ns_add_u32 s64, s64, s57")
    A(f"s_lshl_b32 s9, s64, 15\ns_lshl_b32 s68, s59, 10\ns_add_u32 s9, s9, s68\ns_add_u32 s9, s9, {WS_SCG}")
    A("s_lshl_b32 s68, s58, 13\ns_add_u32 s10, s9, s68")
    A(f"s_lshl_b32 s11, s64, 7\ns_add_u32 s11, s11, {WS_CTR}")
    A("s_cmp_eq_u32 s2, 0\ns_cbranch_scc0 L_nozero\ns_cmp_eq_u32 s59, 7\ns_cbranch_scc0 L_nozero")
    A("v_mov_b32 v8, 0\nv_mov_b32 v9, 0\nv_mov_b32 v10, 0\nv_mov_b32 v11, 0\nv_lshlrev_b32 v5, 4, v1")
    for i in range(10):
        A(f"buffer_store_dwordx4 v[8:11], v5, s[48:51], 0 offen offset:{i*1024 if i < 4 else 0} sc0 sc1" if i < 4 else
          f"s_mov_b32 s64, {WS_HACC + i*1024}\nbuffer_store_dwordx4 v[8:11], v5, s[48:51], s64 offen sc0 sc1")
    for i in range(10):
        A(f"s_mov_b32 s64, {WS_YACC + i*1024}\nbuffer_store_dwordx4 v[8:11], v5, s[48:51], s64 offen sc0 sc1")
    for i in range(8):
        A(f"s_mov_b32 s64, {WS_CTR + i*1024}\nbuffer_store_dwordx4 v[8:11], v5, s[48:51], s64 offen sc0 sc1")
    A.label("L_nozero")
    A("v_lshrrev_b32 v5, 4, v1")
    A("v_bfe_u32 v6, v1, 2, 2")
    A("v_and_b32 v7, 1, v6\nv_lshlrev_b32 v7, 1, v7\nv_lshrrev_b32 v6, 1, v6\nv_add_u32 v6, v6, v7")
    A("v_lshlrev_b32 v6, 1, v6\nv_and_b32 v7, 1, v5\nv_add_u32 v6, v6, v7")
    A("v_lshrrev_b32 v5, 1, v5")
    A("v_lshlrev_b32 v5, 9, v5\nv_lshlrev_b32 v6, 2, v6\nv_add_u32 v3, v5, v6")
    A("s_lshl_b32 s64, s59, 10\nv_add_u32 v3, s64, v3")
    A("v_lshlrev_b32 v7, 4, v1\nv_add_u32 v7, s64, v7")
    A(f"v_mov_b32 v4, {NINF:#x}")
    A("v_lshrrev_b32 v5, 5, v1\nv_mul_u32_u24 v5, 12288, v5\nv_and_b32 v6, 31, v1\nv_mul_u32_u24 v6, 12, v6\nv_add_u32 v26, v5, v6")
    A("s_mul_i32 s69, s56, 384\ns_mul_i32 s68, s59, 24576\ns_add_u32 s69, s69, s68")
    A("s_cmp_lt_u32 s59, 2\ns_cbranch_scc0 L_ln_done")
    A("s_lshl_b32 s68, s57, 1\ns_add_u32 s64, s59, s68\ns_mul_i32 s64, s64, 1280")
    A("v_lshlrev_b32 v5, 4, v1\nv_lshlrev_b32 v6, 2, v1")
    A("buffer_load_dwordx4 v[28:31], v5, s[24:27], s64 offen")
    A("buffer_load_dword v25, v6, s[24:27], s64 offen offset:1024")
    A("s_waitcnt vmcnt(0)")
    for e in range(4):
        A(f"v_lshlrev_b32 v{8+2*e}, 16, v{28+e}\nv_and_b32 v{9+2*e}, 0xffff0000, v{28+e}")
    A("v_lshlrev_b32 v16, 16, v25\nv_and_b32 v17, 0xffff0000, v25")
    layernorm10(A, 8, 18)
    A("v_mov_b32 v6, 0")
    for e in range(10):
        A(f"v_cvt_pk_bf16_f32 v{8+e}, v{8+e}, v6")
    A("v_and_b32 v5, 1, v1\nv_mul_u32_u24 v5, 1280, v5\nv_lshrrev_b32 v6, 1, v1\nv_lshlrev_b32 v6, 2, v6\nv_add_u32 v5, v5, v6")
    A("s_mul_i32 s64, s59, 2560\nv_add_u32 v5, s64, v5")
    for e in range(8):
        A(f"ds_write_b32 v5, v{8+e} offset:{L_XNP + e*160}")
    A("v_and_b32 v5, 7, v1\nv_mul_u32_u24 v5, 320, v5\nv_lshrrev_b32 v6, 3, v1\nv_lshlrev_b32 v6, 2, v6\nv_add_u32 v5, v5, v6")
    A("v_add_u32 v5, s64, v5")
    for e in range(2):
        A(f"ds_write_b32 v5, v{16+e} offset:{L_XNP + 128 + e*160}")
    A.label("L_ln_done")
    for j in range(40):
        w = WQR(j)
        A(f"buffer_load_dwordx3 v[{w}:{w+2}], v26, s[36:39], s69 offen\ns_add_u32 s69, s69, {8*24576}")
    stamp(A)
    A("s_waitcnt lgkmcnt(0)\ns_barrier")
    switch_stream(A, 28, 60)
    stamp(A)
    for i in range(12):
        A(f"v_mov_b32 v{14+i}, 0")
    A("v_lshrrev_b32 v5, 5, v1\ns_lshl_b32 s64, s59, 1\nv_add_u32 v5, s64, v5\nv_mul_u32_u24 v27, 160, v5")
    nk = 0
    for c in range(10):
        A(f"ds_read_b128 v[8:11], v27 offset:{L_XNP + c*16}")
        A(f"ds_read_b128 v[28:31], v27 offset:{L_XNP + 2560 + c*16}")
        for jj in range(4):
            j = c * 4 + jj
            w = WQR(j)
            A(f"s_waitcnt vmcnt({39 - j + nk})" + (" lgkmcnt(0)" if jj == 0 else ""))
            if jj == 0:
                for q in range(4):
                    A(f"v_lshlrev_b32 v{8+q}, 16, v{8+q}\nv_lshlrev_b32 v{28+q}, 16, v{28+q}")
            for e in range(3):
                A(f"v_lshlrev_b32 v5, 16, v{w+e}\nv_and_b32 v6, 0xffff0000, v{w+e}")
                A(f"v_fmac_f32 v{14+2*e}, v5, v{8+jj}\nv_fmac_f32 v{15+2*e}, v6, v{8+jj}")
                A(f"v_fmac_f32 v{20+2*e}, v5, v{28+jj}\nv_fmac_f32 v{21+2*e}, v6, v{28+jj}")
            if j < 16:
                stream_issue(A, j); nk += 1
            elif j >= 24:
                stream_issue(A, 16 + j - 24); nk += 1
        if c == 0:
            A("s_cmp_eq_u32 s2, 0\ns_cbranch_scc0 L_nozf\ns_cmp_eq_u32 s59, 7\ns_cbranch_scc0 L_nozf")
            A("v_mov_b32 v5, 1\nv_mov_b32 v6, 0\ns_mov_b64 exec, 1")
            A("buffer_store_dword v5, v6, s[44:47], 0 offen offset:160 sc0 sc1")
            A("s_mov_b64 exec, -1")
            A.label("L_nozf")
    cross_wave_reduce_192(A, "q")
    A("v_and_b32 v5, 31, v1\nv_mul_u32_u24 v5, 12, v5")
    for tau in range(2):
        for e in range(3):
            A(f"ds_read_b32 v{8+3*tau+e}, v5 offset:{L_QB + tau*384 + e*4}")
    A("s_waitcnt lgkmcnt(0)")
    if DEBUG:
        A("s_cmp_eq_u32 s59, 0\ns_cbranch_scc0 L_dbgq")
        A(f"s_lshl_b32 s64, s2, 12\ns_add_u32 s64, s64, {WS_DBG}\nv_lshlrev_b32 v5, 5, v1")
        for i in range(6):
            A(f"buffer_store_dword v{8+i}, v5, s[48:51], s64 offen offset:{i*4}")
        A.label("L_dbgq")

    stamp(A)
    for tau in range(2):
        A("s_mov_b32 s63, 0")
        A.label(f"L_K{tau}")
        A("s_waitcnt lgkmcnt(0)\ns_barrier")
        A(f"s_cmp_eq_u32 s63, 3\ns_cbranch_scc0 L_K{tau}_h3")
        if tau == 0:
            switch_stream(A, 28, 61)
        else:
            switch_stream(A, 32, 60)
        A.label(f"L_K{tau}_h3")
        if tau == 1:
            hooks(A, 0, "K1")
        for g in range(4):
            for i in range(8):
                k_slot(A, 8 * g + i, 8 + 3 * tau)
            k_group_reduce(A, g, tau)
        A("v_add_u32 v3, 128, v3")
        A(f"s_add_u32 s63, s63, 1\ns_cmp_lt_u32 s63, 4\ns_cbranch_scc1 L_K{tau}")
        A("v_subrev_u32 v3, 512, v3")
        local_stats(A, tau)
        stamp(A)
    A("s_cmp_eq_u32 s59, 0\ns_cbranch_scc0 L_gs0")
    global_stats(A, 0)
    A.label("L_gs0")
    for i in range(12):
        A(f"v_mov_b32 v{14+i}, 0")
    A(f"ds_read_b128 v[26:29], v7 offset:{L_S + 8192}\nv_lshlrev_b32 v5, 4, v1\ns_waitcnt lgkmcnt(0)")
    A("buffer_store_dwordx4 v[26:29], v5, s[48:51], s10 offen sc0 sc1")
    A("v_lshrrev_b32 v5, 5, v1\nv_lshlrev_b32 v5, 9, v5\ns_lshl_b32 s64, s59, 10\nv_add_u32 v3, s64, v5")
    A("s_mov_b32 s63, 0")
    A.label("L_V0")
    A("s_waitcnt lgkmcnt(0)\ns_barrier")
    A("s_cmp_eq_u32 s63, 0\ns_cbranch_scc0 L_V0_h0")
    scores_to_p(A, 0)
    A.label("L_V0_h0")
    A("s_cmp_eq_u32 s63, 3\ns_cbranch_scc0 L_V0_h3")
    switch_stream(A, 32, 61)
    A("v_lshrrev_b32 v29, 5, v1\nv_lshlrev_b32 v29, 9, v29")
    A("s_lshl_b32 s12, s58, 3\ns_add_u32 s13, s12, 1")
    score_loads(A, 12, 64)
    score_loads(A, 13, 80)
    A.label("L_V0_h3")
    hooks(A, 1, "V0")
    for c in range(8):
        A(f"ds_read_b128 v[{32+4*c}:{35+4*c}], v3 offset:{L_S + c*16}")
    A("s_waitcnt lgkmcnt(0)")
    for j in range(D):
        v_slot(A, j, 14)
    A("v_add_u32 v3, 128, v3")
    A("s_add_u32 s63, s63, 1\ns_cmp_lt_u32 s63, 4\ns_cbranch_scc1 L_V0")
    A("s_cmp_eq_u32 s59, 0\ns_cbranch_scc0 L_gs1")
    global_stats(A, 1)
    A.label("L_gs1")
    stamp(A)
    A("s_mov_b32 s15, 0")
    A.label("L_V1")
    for par in range(2):
        A(f"s_cmp_eq_u32 s59, 0\ns_cbranch_scc0 L_V1_w{par}")
        A(f"s_waitcnt vmcnt(41)\nv_readfirstlane_b32 s64, v{122+par}\ns_nop 3")
        A("s_mul_i32 s65, s64, 43\ns_lshr_b32 s65, s65, 8\ns_mul_i32 s68, s65, 6\ns_sub_u32 s68, s64, s68\ns_lshl_b32 s65, s65, 3\ns_add_u32 s65, s65, s68\ns_add_u32 s65, s65, 2")
        A("s_cmp_lt_u32 s64, 24\ns_cselect_b32 s65, s65, 32")
        A(f"v_mov_b32 v5, s65\nv_mov_b32 v6, 0\ns_mov_b64 exec, 1\nds_write_b32 v6, v5 offset:{L_IDS + 4*par}\ns_mov_b64 exec, -1")
        grab_id(A, 122 + par)
        A.label(f"L_V1_w{par}")
        A("s_waitcnt lgkmcnt(0)\ns_barrier")
        A("s_cmp_ge_u32 s12, 32\ns_cbranch_scc1 L_V1_done")
        A(f"v_mov_b32 v6, 0\nds_read_b32 v5, v6 offset:{L_IDS + 4*par}")
        A("s_cmp_eq_u32 s15, 0\ns_cbranch_scc0 L_V1_ng%d" % par)
        A(f"ds_read_b64 v[30:31], v6 offset:{L_GST + 8}")
        A.label("L_V1_ng%d" % par)
        A("s_waitcnt vmcnt(36) lgkmcnt(0)\nv_readfirstlane_b32 s14, v5")
        R = 64 + 16 * par
        for e in range(16):
            A(f"v_sub_f32 v{32+e}, v{R+e}, v30")
        for e in range(16):
            A(f"v_mul_f32 v{32+e}, s83, v{32+e}")
        for e in range(16):
            A(f"v_exp_f32 v{32+e}, v{32+e}")
        A("v_mov_b32 v6, 0")
        for e in range(16):
            A(f"v_mul_f32 v{32+e}, v{32+e}, v31")
        for e in range(16):
            A(f"v_cvt_pk_bf16_f32 v{32+e}, v{32+e}, v6")
        score_loads(A, 14, R)
        A("s_mul_i32 s62, s14, 98304\ns_add_u32 s62, s62, s8")
        A(f"s_cmp_lt_u32 s14, 32\ns_cselect_b32 s54, {KV_BYTES}, 0")
        for jj in range(16):
            v_slot(A, 16 * par + jj, 20, p=32 + jj)
        A("s_mov_b32 s12, s13\ns_mov_b32 s13, s14\ns_add_u32 s15, s15, 1")
    A("s_branch L_V1")
    A.label("L_V1_done")
    A("s_waitcnt vmcnt(0)")
    stamp(A)
    A("s_mul_i32 s64, s56, 192\ns_mul_i32 s68, s59, 24\ns_add_u32 s64, s64, s68\ns_mul_i32 s64, s64, 1280")
    A("v_lshlrev_b32 v5, 4, v1\nv_lshlrev_b32 v6, 2, v1")
    for ii in range(24):
        A(f"buffer_load_dwordx4 v[{32+4*ii}:{35+4*ii}], v5, s[40:43], s64 offen")
        A(f"buffer_load_dword v{128+ii}, v6, s[40:43], s64 offen offset:1024")
        A("s_add_u32 s64, s64, 1280")
    cross_wave_reduce_192(A, "o")
    if DEBUG:
        A(f"v_lshlrev_b32 v5, 2, v0\nv_cmp_gt_u32 vcc, 384, v0\ns_and_saveexec_b64 s[64:65], vcc")
        A(f"ds_read_b32 v6, v5 offset:{L_OV}\ns_waitcnt lgkmcnt(0)")
        A(f"s_lshl_b32 s68, s2, 12\ns_add_u32 s68, s68, {WS_DBG + 2048}")
        A("buffer_store_dword v6, v5, s[48:51], s68 offen")
        A("s_mov_b64 exec, -1")
    stamp(A)
    A("s_mul_i32 s64, s59, 192\nv_mov_b32 v7, s64")
    for c in range(12):
        A(f"ds_read_b128 v[{176+4*c}:{179+4*c}], v7 offset:{L_OV + c*16}")
    for i in range(20):
        A(f"v_mov_b32 v{224+i}, 0")
    A("s_waitcnt vmcnt(0) lgkmcnt(0)")
    for ii in range(24):
        o0 = 176 + 2 * ii
        for e in range(5):
            w = (32 + 4 * ii + e) if e < 4 else (128 + ii)
            A(f"v_lshlrev_b32 v5, 16, v{w}\nv_and_b32 v6, 0xffff0000, v{w}")
            A(f"v_fmac_f32 v{224+2*e}, v5, v{o0}\nv_fmac_f32 v{225+2*e}, v6, v{o0}")
            A(f"v_fmac_f32 v{234+2*e}, v5, v{o0+1}\nv_fmac_f32 v{235+2*e}, v6, v{o0+1}")
    A("s_mul_i32 s64, s59, 5120\nv_lshlrev_b32 v5, 5, v1\nv_add_u32 v5, s64, v5\nv_lshlrev_b32 v6, 3, v1\nv_add_u32 v6, s64, v6")
    for tau in range(2):
        A(f"ds_write_b128 v5, v[{224+10*tau}:{227+10*tau}] offset:{L_OUTP + tau*2560}")
        A(f"ds_write_b128 v5, v[{228+10*tau}:{231+10*tau}] offset:{L_OUTP + tau*2560 + 16}")
        A(f"ds_write_b64 v6, v[{232+10*tau}:{233+10*tau}] offset:{L_OUTP + tau*2560 + 2048}")
    A("s_waitcnt lgkmcnt(0)\ns_barrier")
    A(f"s_mul_i32 s64, s57, 5120\ns_add_u32 s64, s64, {WS_HACC}\nv_lshlrev_b32 v5, 2, v0")
    for k in range(3):
        for w in range(8):
            A(f"ds_read_b32 v{8+8*k+w}, v5 offset:{L_OUTP + k*2048 + w*5120}")
    A("s_waitcnt lgkmcnt(0)")
    for k in range(3):
        r = 8 + 8 * k
        for w in range(4):
            A(f"v_add_f32 v{r+w}, v{r+w}, v{r+4+w}")
        A(f"v_add_f32 v{r}, v{r}, v{r+2}\nv_add_f32 v{r+1}, v{r+1}, v{r+3}\nv_add_f32 v{r}, v{r}, v{r+1}")
    A("buffer_atomic_add_f32 v8, v5, s[48:51], s64 offen")
    A("buffer_atomic_add_f32 v16, v5, s[48:51], s64 offen offset:2048")
    A("v_cmp_gt_u32 vcc, 256, v0\ns_and_saveexec_b64 s[66:67], vcc\ns_cbranch_execz L_endA2")
    A("s_add_u32 s64, s64, 4096\ns_nop 3")
    A("buffer_atomic_add_f32 v24, v5, s[48:51], s64 offen")
    A.label("L_endA2")
    A("s_mov_b64 exec, -1")
    stamp(A)
    stamp_dump(A, WS_DBG + 0x200000)
    A.label("L_endA")
    A("s_endpgm")


def layernorm10(A, x, t):
    s, u, m, vv, r = t, t + 1, t + 2, t + 3, t + 4
    A(f"v_add_f32 v{s}, v{x}, v{x+1}")
    for e in range(2, 10):
        A(f"v_add_f32 v{s}, v{s}, v{x+e}")
    wave_reduce(A, "add", s, u)
    A(f"v_mul_f32 v{m}, {INV640:#x}, v{s}")
    A(f"v_sub_f32 v{u}, v{x}, v{m}\nv_mul_f32 v{s}, v{u}, v{u}")
    for e in range(1, 10):
        A(f"v_sub_f32 v{u}, v{x+e}, v{m}\nv_fmac_f32 v{s}, v{u}, v{u}")
    wave_reduce(A, "add", s, u)
    A(f"v_mul_f32 v{vv}, {INV640:#x}, v{s}")
    rne(A, m)
    rne(A, vv)
    A(f"v_add_f32 v{vv}, {EPS:#x}, v{vv}")
    rne(A, vv)
    A(f"v_sqrt_f32 v{vv}, v{vv}\ns_nop 0")
    rne(A, vv)
    A(f"v_rcp_f32 v{r}, v{vv}\ns_nop 0")
    for e in range(10):
        A(f"v_sub_f32 v{x+e}, v{x+e}, v{m}")
        rne(A, x + e)
        A(f"v_mul_f32 v{s}, v{x+e}, v{r}")
        A(f"v_fma_f32 v{u}, -v{s}, v{vv}, v{x+e}")
        A(f"v_fma_f32 v{x+e}, v{u}, v{r}, v{s}")
        rne(A, x + e)


def cross_wave_reduce_192(A, kind):
    A("v_lshrrev_b32 v5, 5, v1\ns_lshl_b32 s64, s59, 1\nv_add_u32 v5, s64, v5\nv_mul_u32_u24 v5, 768, v5")
    A("v_and_b32 v6, 31, v1\nv_mul_u32_u24 v6, 24, v6\nv_add_u32 v5, v5, v6")
    for tau in range(2):
        for e in range(3):
            A(f"ds_write_b64 v5, v[{14+6*tau+2*e}:{15+6*tau+2*e}] offset:{L_QR + tau*12288 + e*8}")
    A("s_waitcnt lgkmcnt(0)\ns_barrier")
    A("v_cmp_gt_u32 vcc, 384, v0\ns_and_saveexec_b64 s[64:65], vcc")
    A(f"s_cbranch_execz L_cw_{kind}")
    A("v_cmp_le_u32 vcc, 192, v0\nv_mov_b32 v6, 0\nv_mov_b32 v5, 11520\ns_nop 0\nv_cndmask_b32 v6, v6, v5, vcc")
    A("v_lshlrev_b32 v5, 2, v0\nv_add_u32 v5, v5, v6")
    T = 112 if kind == "q" else 240
    for s in range(16):
        A(f"ds_read_b32 v{T+s}, v5 offset:{L_QR + s*768}")
    A("s_waitcnt lgkmcnt(0)")
    for s in range(8):
        A(f"v_add_f32 v{T+s}, v{T+s}, v{T+8+s}")
    for s in range(4):
        A(f"v_add_f32 v{T+s}, v{T+s}, v{T+4+s}")
    A(f"v_add_f32 v{T}, v{T}, v{T+2}\nv_add_f32 v{T+1}, v{T+1}, v{T+3}\nv_add_f32 v{T}, v{T}, v{T+1}")
    if kind == "q":
        A(f"v_cvt_pk_bf16_f32 v{T}, v{T}, v{T}\nv_lshlrev_b32 v5, 1, v0")
        A(f"ds_write_b16 v5, v{T} offset:{L_QB}")
    else:
        A(f"v_lshlrev_b32 v5, 3, v0\nv_mov_b32 v6, 0\nv_mov_b32 v{T+1}, 1532\nv_cndmask_b32 v6, v6, v{T+1}, vcc\nv_sub_u32 v5, v5, v6")
        A(f"ds_write_b32 v5, v{T} offset:{L_OV}")
    A.label(f"L_cw_{kind}")
    A("s_mov_b64 exec, -1")
    A("s_waitcnt lgkmcnt(0)\ns_barrier")


def kd(name, vgpr, sgpr=100):
    return f""".amdhsa_kernel {name}
  .amdhsa_next_free_vgpr {vgpr}
  .amdhsa_next_free_sgpr {sgpr}
  .amdhsa_accum_offset {vgpr}
  .amdhsa_group_segment_fixed_size 0
  .amdhsa_kernarg_size 104
  .amdhsa_user_sgpr_count 2
  .amdhsa_user_sgpr_kernarg_segment_ptr 1
  .amdhsa_system_sgpr_workgroup_id_x 1
.end_amdhsa_kernel
"""


HEADER = """; Kernarg layout for this problem (104 bytes, ptrs only, base s[0:1]):
;   offset  88: d_debug   256 bytes
"""


def main():
    global DEBUG, TIMING
    out = sys.argv[1] if len(sys.argv) > 1 else f"cdna_kernels/{NAME}.s"
    DEBUG = len(sys.argv) > 2 and sys.argv[2] == "debug"
    TIMING = len(sys.argv) > 2 and sys.argv[2] == "timing"
    only_a = len(sys.argv) > 3 and sys.argv[3] == "A"
    A = Asm()
    A.raw(HEADER.rstrip())
    A.raw(f"; @launch kernel=attn_kernel grid=(256,1,1) block=(512,1,1) lds={L_END_A}")
    if not only_a:
        import gen_mlp
        A.raw(gen_mlp.launch_line())
    A.raw('.amdgcn_target "amdgcn-amd-amdhsa--gfx950"\n.text')
    gen_attn(A)
    if not only_a:
        gen_mlp.gen_mlp(A, DEBUG)
    A.raw('.section .rodata,"a"\n.p2align 6')
    A.raw(kd("attn_kernel", 256))
    if not only_a:
        A.raw(".p2align 6")
        A.raw(gen_mlp.kd())
    open(out, "w").write(A.text())


if __name__ == "__main__":
    import gen as _g
    _g.main()
```

```python
import sys

NAME = "sequential_preLN__mha_block_cached__moe_arch_mod__decode"
DEBUG = False

KV_BYTES = 4 * 32 * 8192 * 192 * 2
W_BYTES = 640 * 6144 * 2

WS_HACC = 0x0000
WS_YACC = 0x4000
WS_STATS = 0x8000
WS_CTR = 0x10000
WS_SCG = 0x20000
WS_DBG = 0x400000
WS_SIZE = 0x1000000

L_S = 0
L_XNP = 16384
L_QR = 21504
L_QB = 46080
L_OV = 46848
L_WST = 48384
L_GST = 48512
L_IDS = 48576
L_OUTP = 0
L_END_A = 48640

SCALE = 0x3d93cd3a
LOG2E = 0x3fb8aa3b
INV640 = 0x3acccccd
EPS = 0x3727c5ac
NINF = 0xff800000


class Asm:
    def __init__(self):
        self.L = []

    def __call__(self, s):
        for line in s.split("\n"):
            line = line.strip()
            if line:
                self.L.append("  " + line)

    def label(self, l):
        self.L.append(l + ":")

    def raw(self, s):
        self.L.append(s)

    def text(self):
        return "\n".join(self.L) + "\n"


def srd(A, d, lo, hi, size):
    A(f"s_mov_b32 s{d}, s{lo}\ns_mov_b32 s{d+1}, s{hi}\ns_mov_b32 s{d+2}, {size}\ns_mov_b32 s{d+3}, 0x00020000")


def rne(A, r):
    A(f"v_cvt_pk_bf16_f32 v{r}, v{r}, v{r}\nv_lshlrev_b32 v{r}, 16, v{r}")


def wave_reduce(A, op, r, t, full=True):
    for dpp in ["quad_perm:[1,0,3,2]", "quad_perm:[2,3,0,1]", "row_half_mirror", "row_mirror"]:
        A(f"s_nop 1\nv_{op}_f32_dpp v{r}, v{r}, v{r} {dpp} row_mask:0xf bank_mask:0xf")
    A(f"v_mov_b32 v{t}, v{r}\ns_nop 1\nv_permlane16_swap_b32 v{r}, v{t}\ns_nop 1\nv_{op}_f32 v{r}, v{r}, v{t}")
    if full:
        A(f"v_mov_b32 v{t}, v{r}\ns_nop 1\nv_permlane32_swap_b32 v{r}, v{t}\ns_nop 1\nv_{op}_f32 v{r}, v{r}, v{t}")


TIMING = False
FUSED = True
_stamp_n = [0]
def stamp(A, dup=False):
    if not TIMING:
        return
    n = _stamp_n[0]; _stamp_n[0] += 1
    if dup:
        n -= 1; _stamp_n[0] -= 1
    assert n < 12, n
    A(f"s_memrealtime s[96:97]\ns_waitcnt lgkmcnt(0)\ns_mov_b32 s{84+n}, s96")


def stamp_dump(A, base):
    if not TIMING:
        return
    A(f"s_lshl_b32 s98, s2, 4\ns_add_u32 s98, s98, s59\ns_lshl_b32 s98, s98, 6\ns_add_u32 s98, s98, {base}")
    A("v_mov_b32 v6, 0\ns_mov_b64 exec, 1")
    for n in range(_stamp_n[0]):
        A(f"v_mov_b32 v5, s{84+n}\nbuffer_store_dword v5, v6, s[48:51], s98 offen offset:{4*n}")
    A("s_mov_b64 exec, -1")
    _stamp_n[0] = 0


SB = 128
D = 32


def WQR(j):
    return 32 + 4 * j if j < 24 else SB + 64 + 4 * (j - 24)


def stream_issue(A, j, nt=True):
    r = SB + 4 * j
    A(f"buffer_load_dwordx3 v[{r}:{r+2}], v2, s[52:55], s62 offen nt")
    A("s_add_u32 s62, s62, 6144")


def k_slot(A, j, q, reissue=True, wait=D - 1):
    r = SB + 4 * j
    A(f"s_waitcnt vmcnt({wait})")
    A(f"v_dot2_f32_bf16 v{r+3}, v{r}, v{q}, 0")
    A(f"v_dot2_f32_bf16 v{r+3}, v{r+1}, v{q+1}, v{r+3}")
    A(f"v_dot2_f32_bf16 v{r+3}, v{r+2}, v{q+2}, v{r+3}")
    if reissue:
        stream_issue(A, j)


def k_group_reduce(A, g, tau):
    P = [SB + 4 * (8 * g + i) + 3 for i in range(8)]
    A("s_nop 1")
    for k in range(4):
        A(f"v_permlane16_swap_b32 v{P[2*k]}, v{P[2*k+1]}")
    A("s_nop 0")
    for k in range(4):
        A(f"v_add_f32 v{P[2*k]}, v{P[2*k]}, v{P[2*k+1]}")
    B = [P[0], P[2], P[4], P[6]]
    A("s_nop 0")
    A(f"v_add_f32_dpp v{B[0]}, v{B[0]}, v{B[0]} row_ror:8 row_mask:0xf bank_mask:0x3")
    A(f"v_add_f32_dpp v{B[2]}, v{B[2]}, v{B[2]} row_ror:8 row_mask:0xf bank_mask:0x3")
    A(f"v_add_f32_dpp v{B[0]}, v{B[1]}, v{B[1]} row_ror:8 row_mask:0xf bank_mask:0xc")
    A(f"v_add_f32_dpp v{B[2]}, v{B[3]}, v{B[3]} row_ror:8 row_mask:0xf bank_mask:0xc")
    A("s_nop 1")
    A(f"v_add_f32_dpp v{B[0]}, v{B[0]}, v{B[0]} row_half_mirror row_mask:0xf bank_mask:0x5")
    A(f"v_add_f32_dpp v{B[0]}, v{B[2]}, v{B[2]} row_half_mirror row_mask:0xf bank_mask:0xa")
    A("s_nop 1")
    A(f"v_add_f32_dpp v{B[0]}, v{B[0]}, v{B[0]} quad_perm:[1,0,3,2] row_mask:0xf bank_mask:0xf")
    A("s_nop 1")
    A(f"v_add_f32_dpp v{B[0]}, v{B[0]}, v{B[0]} quad_perm:[2,3,0,1] row_mask:0xf bank_mask:0xf")
    r = B[0]
    A(f"v_cvt_pk_bf16_f32 v{r}, v{r}, v{r}")
    A(f"v_lshlrev_b32 v{r}, 16, v{r}")
    A(f"v_mul_f32 v{r}, s82, v{r}")
    A(f"v_cvt_pk_bf16_f32 v{r}, v{r}, v{r}")
    A(f"v_lshlrev_b32 v{r}, 16, v{r}")
    A(f"v_max_f32 v4, v4, v{r}")
    A("s_mov_b64 exec, s[80:81]")
    A(f"ds_write_b32 v3, v{r} offset:{L_S + tau*8192 + g*32}")
    A("s_mov_b64 exec, -1")


def v_slot(A, j, acc, reissue=True, wait=D - 1, p=None):
    r = SB + 4 * j
    if p is None:
        p = 32 + j
    t = 26 + (j & 1)
    A(f"s_waitcnt vmcnt({wait})")
    A(f"v_lshlrev_b32 v{t}, 16, v{p}")
    A(f"v_dot2c_f32_bf16 v{acc+0}, v{r}, v{p}")
    A(f"v_dot2c_f32_bf16 v{acc+2}, v{r+1}, v{p}")
    A(f"v_dot2c_f32_bf16 v{acc+4}, v{r+2}, v{p}")
    A(f"v_dot2c_f32_bf16 v{acc+1}, v{r}, v{t}")
    A(f"v_dot2c_f32_bf16 v{acc+3}, v{r+1}, v{t}")
    A(f"v_dot2c_f32_bf16 v{acc+5}, v{r+2}, v{t}")
    if reissue:
        stream_issue(A, j)


def local_stats(A, tau):
    A("s_waitcnt lgkmcnt(0)")
    A(f"ds_read_b128 v[28:31], v7 offset:{L_S + tau*8192}")
    wave_reduce(A, "max", 4, 5)
    A("s_waitcnt lgkmcnt(0)")
    for e in range(4):
        A(f"v_sub_f32 v{28+e}, v{28+e}, v4")
    for e in range(4):
        A(f"v_mul_f32 v{28+e}, s83, v{28+e}")
    for e in range(4):
        A(f"v_exp_f32 v{28+e}, v{28+e}")
    A("s_nop 0")
    A("v_add_f32 v28, v28, v29\nv_add_f32 v30, v30, v31\nv_add_f32 v5, v28, v30")
    wave_reduce(A, "add", 5, 6)
    A("s_lshl_b32 s64, s59, 3\nv_mov_b32 v6, s64")
    A("s_mov_b64 exec, 1")
    A(f"ds_write_b64 v6, v[4:5] offset:{L_WST + tau*64}")
    A("s_mov_b64 exec, -1")
    A(f"v_mov_b32 v4, {NINF:#x}")


def combine8(A, m, l, n_full):
    A(f"v_mov_b32 v5, v{m}")
    for dpp in ["quad_perm:[1,0,3,2]", "quad_perm:[2,3,0,1]", "row_half_mirror"][:n_full]:
        A(f"s_nop 1\nv_max_f32_dpp v5, v5, v5 {dpp} row_mask:0xf bank_mask:0xf")
    A(f"v_sub_f32 v{m}, v{m}, v5\nv_mul_f32 v{m}, s83, v{m}\nv_exp_f32 v{m}, v{m}\ns_nop 0\nv_mul_f32 v{l}, v{l}, v{m}")
    for dpp in ["quad_perm:[1,0,3,2]", "quad_perm:[2,3,0,1]", "row_half_mirror"][:n_full]:
        A(f"s_nop 1\nv_add_f32_dpp v{l}, v{l}, v{l} {dpp} row_mask:0xf bank_mask:0xf")
    A(f"v_mov_b32 v{m}, v5")


def wg_publish_payload(A, tau):
    A("v_and_b32 v6, 7, v1\nv_lshlrev_b32 v6, 3, v6")
    A(f"ds_read_b64 v[30:31], v6 offset:{L_WST + tau*64}\ns_waitcnt lgkmcnt(0)")
    combine8(A, 30, 31, 3)
    A("v_mov_b32 v6, 0\ns_mov_b64 exec, 1")
    A(f"buffer_store_dwordx2 v[30:31], v6, s[48:51], s{72+tau} offen sc0 sc1")
    A("s_mov_b64 exec, -1")


def flag_add(A, tau):
    A("v_mov_b32 v6, 0\nv_mov_b32 v5, s79")
    A("s_mov_b64 exec, 1")
    A(f"buffer_atomic_add v5, v6, s[44:47], s{76+tau} offen sc1")
    A("s_mov_b64 exec, -1")


def poll_issue(A, tau):
    A("v_mov_b32 v6, 0")
    A(f"buffer_load_dword v126, v6, s[44:47], s{76+tau} offen sc0 sc1")


def poll_check_and_payload(A, tau, name):
    A("v_readfirstlane_b32 s64, v126")
    A("s_nop 3")
    A.label(f"L_chk_{name}")
    A("s_lshr_b32 s64, s64, s78\ns_and_b32 s64, s64, 0xff\ns_cmp_eq_u32 s64, 4")
    A(f"s_cbranch_scc1 L_ok_{name}")
    A("s_sleep 8")
    poll_issue(A, tau)
    A("s_waitcnt vmcnt(0)\nv_readfirstlane_b32 s64, v126\ns_nop 3")
    A(f"s_branch L_chk_{name}")
    A.label(f"L_ok_{name}")
    A("v_and_b32 v6, 3, v1\nv_lshlrev_b32 v6, 3, v6")
    A(f"buffer_load_dwordx2 v[124:125], v6, s[48:51], s{74+tau} offen sc0 sc1")


def global_stats(A, tau):
    combine8(A, 124, 125, 2)
    A("v_rcp_f32 v6, v125\ns_nop 0")
    A("v_fma_f32 v5, -v125, v6, 1.0\nv_fma_f32 v125, v5, v6, v6")
    A("v_mov_b32 v6, 0\ns_mov_b64 exec, 1")
    A(f"ds_write_b64 v6, v[124:125] offset:{L_GST + tau*8}")
    A("s_mov_b64 exec, -1")


def scores_to_p(A, tau):
    A("v_mov_b32 v6, 0")
    A(f"ds_read_b128 v[26:29], v7 offset:{L_S + tau*8192}")
    A(f"ds_read_b64 v[30:31], v6 offset:{L_GST + tau*8}")
    A("s_waitcnt lgkmcnt(0)")
    for e in range(4):
        A(f"v_sub_f32 v{26+e}, v{26+e}, v30")
    for e in range(4):
        A(f"v_mul_f32 v{26+e}, s83, v{26+e}")
    for e in range(4):
        A(f"v_exp_f32 v{26+e}, v{26+e}")
    A("s_nop 0")
    for e in range(4):
        A(f"v_mul_f32 v{26+e}, v{26+e}, v31")
    for e in range(4):
        A(f"v_cvt_pk_bf16_f32 v{26+e}, v{26+e}, v6")
    A(f"ds_write_b128 v7, v[26:29] offset:{L_S + tau*8192}")
    A("s_waitcnt lgkmcnt(0)")


def switch_stream(A, srd_base, off_sreg):
    A(f"s_mov_b32 s52, s{srd_base}\ns_mov_b32 s53, s{srd_base+1}\ns_mov_b32 s54, s{srd_base+2}\ns_mov_b32 s55, s{srd_base+3}")
    A(f"s_mov_b32 s62, s{off_sreg}")


def grab_id(A, r):
    A(f"v_mov_b32 v{r}, 1\nv_mov_b32 v6, 0\ns_mov_b64 exec, 1")
    A(f"buffer_atomic_add v{r}, v6, s[48:51], s11 offen sc0 sc1")
    A("s_mov_b64 exec, -1")


def score_loads(A, idreg, rset):
    A(f"s_lshr_b32 s64, s{idreg}, 3\ns_lshl_b32 s64, s64, 13\ns_and_b32 s65, s{idreg}, 7\ns_lshl_b32 s65, s65, 6")
    A("s_add_u32 s64, s64, s65\ns_add_u32 s64, s64, s9")
    for k in range(4):
        A(f"buffer_load_dwordx4 v[{rset+4*k}:{rset+4*k+3}], v29, s[48:51], s64 offen offset:{16*k} sc0 sc1")


def hooks(A, tau, name):
    A(f"s_cmp_eq_u32 s59, 0\ns_cbranch_scc0 L_{name}_hx")
    A(f"s_cmp_eq_u32 s63, 0\ns_cbranch_scc0 L_{name}_a")
    wg_publish_payload(A, tau)
    if tau == 1:
        A("v_mov_b32 v6, 0\nbuffer_load_dword v127, v6, s[44:47], 0 offen offset:160 sc0 sc1")
    A(f"s_branch L_{name}_hx")
    A.label(f"L_{name}_a")
    A(f"s_cmp_eq_u32 s63, 1\ns_cbranch_scc0 L_{name}_b")
    flag_add(A, tau)
    if tau == 1:
        A.label("L_zf")
        A("v_readfirstlane_b32 s64, v127\ns_nop 3\ns_cmp_eq_u32 s64, 1\ns_cbranch_scc1 L_zf_ok\ns_sleep 8")
        A("v_mov_b32 v6, 0\nbuffer_load_dword v127, v6, s[44:47], 0 offen offset:160 sc0 sc1\ns_waitcnt vmcnt(0)\ns_branch L_zf")
        A.label("L_zf_ok")
        grab_id(A, 122)
    A(f"s_branch L_{name}_hx")
    A.label(f"L_{name}_b")
    A(f"s_cmp_eq_u32 s63, 2\ns_cbranch_scc0 L_{name}_c")
    poll_issue(A, tau)
    if tau == 1:
        grab_id(A, 123)
    A(f"s_branch L_{name}_hx")
    A.label(f"L_{name}_c")
    poll_check_and_payload(A, tau, name)
    A.label(f"L_{name}_hx")


def gen_attn(A):
    A.raw(".globl attn_kernel\n.p2align 8\n.type attn_kernel,@function\nattn_kernel:")
    A("s_cmp_ge_u32 s2, 256\ns_cbranch_scc1 L_endA")
    A("s_load_dwordx8 s[8:15], s[0:1], 0")
    A("s_load_dwordx2 s[16:17], s[0:1], 32")
    A("s_load_dwordx4 s[20:23], s[0:1], 88")
    A("v_and_b32 v1, 63, v0\nv_lshrrev_b32 v5, 6, v0\ns_nop 0\nv_readfirstlane_b32 s59, v5")
    A("s_and_b32 s64, s2, 1\ns_lshr_b32 s56, s2, 4\ns_lshl_b32 s56, s56, 1\ns_add_u32 s56, s56, s64")
    A("s_bfe_u32 s57, s2, 0x10003\ns_bfe_u32 s58, s2, 0x20001")
    A("v_mul_u32_u24 v2, 12, v1")
    A(f"s_mov_b32 s82, {SCALE:#x}\ns_mov_b32 s83, {LOG2E:#x}")
    A("s_mov_b32 s80, 0x11111111\ns_mov_b32 s81, 0x11111111")
    A("s_lshl_b32 s65, s57, 6\ns_add_u32 s65, s65, s56\ns_add_u32 s66, s65, 32")
    A("s_mul_i32 s67, s58, 786432\ns_mul_i32 s68, s59, 768\ns_add_u32 s67, s67, s68")
    A("s_mul_i32 s60, s65, 3145728\ns_add_u32 s60, s60, s67")
    A("s_add_u32 s61, s60, 100663296")
    A("s_lshl_b32 s68, s58, 3")
    A(f"s_lshl_b32 s74, s65, 7\ns_add_u32 s74, s74, {WS_STATS}\ns_add_u32 s75, s74, 4096")
    A("s_add_u32 s72, s74, s68\ns_add_u32 s73, s75, s68")
    A("s_lshr_b32 s76, s65, 2\ns_lshl_b32 s76, s76, 2\ns_add_u32 s77, s76, 32")
    A("s_and_b32 s78, s56, 3\ns_lshl_b32 s78, s78, 3\ns_lshl_b32 s79, 1, s78")
    A("s_waitcnt lgkmcnt(0)")
    stamp(A)
    srd(A, 24, 8, 9, 5120)
    srd(A, 28, 10, 11, KV_BYTES)
    srd(A, 32, 12, 13, KV_BYTES)
    srd(A, 36, 14, 15, W_BYTES)
    srd(A, 40, 16, 17, W_BYTES)
    srd(A, 44, 20, 21, 256)
    srd(A, 48, 22, 23, WS_SIZE)
    A("s_mul_i32 s8, s66, 3145728\ns_mul_i32 s64, s59, 768\ns_add_u32 s8, s8, s64")
    A("s_lshl_b32 s64, s56, 1\ns_add_u32 s64, s64, s57")
    A(f"s_lshl_b32 s9, s64, 15\ns_lshl_b32 s68, s59, 10\ns_add_u32 s9, s9, s68\ns_add_u32 s9, s9, {WS_SCG}")
    A("s_lshl_b32 s68, s58, 13\ns_add_u32 s10, s9, s68")
    A(f"s_lshl_b32 s11, s64, 7\ns_add_u32 s11, s11, {WS_CTR}")
    A("s_cmp_eq_u32 s2, 0\ns_cbranch_scc0 L_nozero\ns_cmp_eq_u32 s59, 7\ns_cbranch_scc0 L_nozero")
    A("v_mov_b32 v8, 0\nv_mov_b32 v9, 0\nv_mov_b32 v10, 0\nv_mov_b32 v11, 0\nv_lshlrev_b32 v5, 4, v1")
    for i in range(10):
        A(f"buffer_store_dwordx4 v[8:11], v5, s[48:51], 0 offen offset:{i*1024 if i < 4 else 0} sc0 sc1" if i < 4 else
          f"s_mov_b32 s64, {WS_HACC + i*1024}\nbuffer_store_dwordx4 v[8:11], v5, s[48:51], s64 offen sc0 sc1")
    for i in range(10):
        A(f"s_mov_b32 s64, {WS_YACC + i*1024}\nbuffer_store_dwordx4 v[8:11], v5, s[48:51], s64 offen sc0 sc1")
    for i in range(8):
        A(f"s_mov_b32 s64, {WS_CTR + i*1024}\nbuffer_store_dwordx4 v[8:11], v5, s[48:51], s64 offen sc0 sc1")
    A.label("L_nozero")
    A("v_lshrrev_b32 v5, 4, v1")
    A("v_bfe_u32 v6, v1, 2, 2")
    A("v_and_b32 v7, 1, v6\nv_lshlrev_b32 v7, 1, v7\nv_lshrrev_b32 v6, 1, v6\nv_add_u32 v6, v6, v7")
    A("v_lshlrev_b32 v6, 1, v6\nv_and_b32 v7, 1, v5\nv_add_u32 v6, v6, v7")
    A("v_lshrrev_b32 v5, 1, v5")
    A("v_lshlrev_b32 v5, 9, v5\nv_lshlrev_b32 v6, 2, v6\nv_add_u32 v3, v5, v6")
    A("s_lshl_b32 s64, s59, 10\nv_add_u32 v3, s64, v3")
    A("v_lshlrev_b32 v7, 4, v1\nv_add_u32 v7, s64, v7")
    A(f"v_mov_b32 v4, {NINF:#x}")
    A("v_lshrrev_b32 v5, 5, v1\nv_mul_u32_u24 v5, 12288, v5\nv_and_b32 v6, 31, v1\nv_mul_u32_u24 v6, 12, v6\nv_add_u32 v26, v5, v6")
    A("s_mul_i32 s69, s56, 384\ns_mul_i32 s68, s59, 24576\ns_add_u32 s69, s69, s68")
    A("s_cmp_lt_u32 s59, 2\ns_cbranch_scc0 L_ln_done")
    A("s_lshl_b32 s68, s57, 1\ns_add_u32 s64, s59, s68\ns_mul_i32 s64, s64, 1280")
    A("v_lshlrev_b32 v5, 4, v1\nv_lshlrev_b32 v6, 2, v1")
    A("buffer_load_dwordx4 v[28:31], v5, s[24:27], s64 offen")
    A("buffer_load_dword v25, v6, s[24:27], s64 offen offset:1024")
    A("s_waitcnt vmcnt(0)")
    for e in range(4):
        A(f"v_lshlrev_b32 v{8+2*e}, 16, v{28+e}\nv_and_b32 v{9+2*e}, 0xffff0000, v{28+e}")
    A("v_lshlrev_b32 v16, 16, v25\nv_and_b32 v17, 0xffff0000, v25")
    layernorm10(A, 8, 18)
    A("v_mov_b32 v6, 0")
    for e in range(10):
        A(f"v_cvt_pk_bf16_f32 v{8+e}, v{8+e}, v6")
    A("v_and_b32 v5, 1, v1\nv_mul_u32_u24 v5, 1280, v5\nv_lshrrev_b32 v6, 1, v1\nv_lshlrev_b32 v6, 2, v6\nv_add_u32 v5, v5, v6")
    A("s_mul_i32 s64, s59, 2560\nv_add_u32 v5, s64, v5")
    for e in range(8):
        A(f"ds_write_b32 v5, v{8+e} offset:{L_XNP + e*160}")
    A("v_and_b32 v5, 7, v1\nv_mul_u32_u24 v5, 320, v5\nv_lshrrev_b32 v6, 3, v1\nv_lshlrev_b32 v6, 2, v6\nv_add_u32 v5, v5, v6")
    A("v_add_u32 v5, s64, v5")
    for e in range(2):
        A(f"ds_write_b32 v5, v{16+e} offset:{L_XNP + 128 + e*160}")
    A.label("L_ln_done")
    for j in range(40):
        w = WQR(j)
        A(f"buffer_load_dwordx3 v[{w}:{w+2}], v26, s[36:39], s69 offen\ns_add_u32 s69, s69, {8*24576}")
    pass
    A("s_waitcnt lgkmcnt(0)\ns_barrier")
    switch_stream(A, 28, 60)
    for i in range(12):
        A(f"v_mov_b32 v{14+i}, 0")
    A("v_lshrrev_b32 v5, 5, v1\ns_lshl_b32 s64, s59, 1\nv_add_u32 v5, s64, v5\nv_mul_u32_u24 v27, 160, v5")
    nk = 0
    for c in range(10):
        A(f"ds_read_b128 v[8:11], v27 offset:{L_XNP + c*16}")
        A(f"ds_read_b128 v[28:31], v27 offset:{L_XNP + 2560 + c*16}")
        for jj in range(4):
            j = c * 4 + jj
            w = WQR(j)
            A(f"s_waitcnt vmcnt({39 - j + nk})" + (" lgkmcnt(0)" if jj == 0 else ""))
            if jj == 0:
                for q in range(4):
                    A(f"v_lshlrev_b32 v{8+q}, 16, v{8+q}\nv_lshlrev_b32 v{28+q}, 16, v{28+q}")
            for e in range(3):
                A(f"v_lshlrev_b32 v5, 16, v{w+e}\nv_and_b32 v6, 0xffff0000, v{w+e}")
                A(f"v_fmac_f32 v{14+2*e}, v5, v{8+jj}\nv_fmac_f32 v{15+2*e}, v6, v{8+jj}")
                A(f"v_fmac_f32 v{20+2*e}, v5, v{28+jj}\nv_fmac_f32 v{21+2*e}, v6, v{28+jj}")
            if j < 16:
                stream_issue(A, j); nk += 1
            elif j >= 24:
                stream_issue(A, 16 + j - 24); nk += 1
        if c == 0:
            A("s_cmp_eq_u32 s2, 0\ns_cbranch_scc0 L_nozf\ns_cmp_eq_u32 s59, 7\ns_cbranch_scc0 L_nozf")
            A("v_mov_b32 v5, 1\nv_mov_b32 v6, 0\ns_mov_b64 exec, 1")
            A("buffer_store_dword v5, v6, s[44:47], 0 offen offset:160 sc0 sc1")
            A("s_mov_b64 exec, -1")
            A.label("L_nozf")
    cross_wave_reduce_192(A, "q")
    A("v_and_b32 v5, 31, v1\nv_mul_u32_u24 v5, 12, v5")
    for tau in range(2):
        for e in range(3):
            A(f"ds_read_b32 v{8+3*tau+e}, v5 offset:{L_QB + tau*384 + e*4}")
    A("s_waitcnt lgkmcnt(0)")
    if DEBUG:
        A("s_cmp_eq_u32 s59, 0\ns_cbranch_scc0 L_dbgq")
        A(f"s_lshl_b32 s64, s2, 12\ns_add_u32 s64, s64, {WS_DBG}\nv_lshlrev_b32 v5, 5, v1")
        for i in range(6):
            A(f"buffer_store_dword v{8+i}, v5, s[48:51], s64 offen offset:{i*4}")
        A.label("L_dbgq")

    pass
    for tau in range(2):
        A("s_mov_b32 s63, 0")
        A.label(f"L_K{tau}")
        A("s_waitcnt lgkmcnt(0)\ns_barrier")
        A(f"s_cmp_eq_u32 s63, 3\ns_cbranch_scc0 L_K{tau}_h3")
        if tau == 0:
            switch_stream(A, 28, 61)
        else:
            switch_stream(A, 32, 60)
        A.label(f"L_K{tau}_h3")
        if tau == 1:
            hooks(A, 0, "K1")
        for g in range(4):
            for i in range(8):
                k_slot(A, 8 * g + i, 8 + 3 * tau)
            k_group_reduce(A, g, tau)
        A("v_add_u32 v3, 128, v3")
        A(f"s_add_u32 s63, s63, 1\ns_cmp_lt_u32 s63, 4\ns_cbranch_scc1 L_K{tau}")
        A("v_subrev_u32 v3, 512, v3")
        local_stats(A, tau)
        pass
    A("s_cmp_eq_u32 s59, 0\ns_cbranch_scc0 L_gs0")
    global_stats(A, 0)
    A.label("L_gs0")
    for i in range(12):
        A(f"v_mov_b32 v{14+i}, 0")
    A(f"ds_read_b128 v[26:29], v7 offset:{L_S + 8192}\nv_lshlrev_b32 v5, 4, v1\ns_waitcnt lgkmcnt(0)")
    A("buffer_store_dwordx4 v[26:29], v5, s[48:51], s10 offen sc0 sc1")
    A("v_lshrrev_b32 v5, 5, v1\nv_lshlrev_b32 v5, 9, v5\ns_lshl_b32 s64, s59, 10\nv_add_u32 v3, s64, v5")
    A("s_mov_b32 s63, 0")
    A.label("L_V0")
    A("s_waitcnt lgkmcnt(0)\ns_barrier")
    A("s_cmp_eq_u32 s63, 0\ns_cbranch_scc0 L_V0_h0")
    scores_to_p(A, 0)
    A.label("L_V0_h0")
    A("s_cmp_eq_u32 s63, 3\ns_cbranch_scc0 L_V0_h3")
    switch_stream(A, 32, 61)
    A("v_lshrrev_b32 v29, 5, v1\nv_lshlrev_b32 v29, 9, v29")
    A("s_lshl_b32 s12, s58, 3\ns_add_u32 s13, s12, 1")
    score_loads(A, 12, 64)
    score_loads(A, 13, 80)
    A.label("L_V0_h3")
    hooks(A, 1, "V0")
    for c in range(8):
        A(f"ds_read_b128 v[{32+4*c}:{35+4*c}], v3 offset:{L_S + c*16}")
    A("s_waitcnt lgkmcnt(0)")
    for j in range(D):
        v_slot(A, j, 14)
    A("v_add_u32 v3, 128, v3")
    A("s_add_u32 s63, s63, 1\ns_cmp_lt_u32 s63, 4\ns_cbranch_scc1 L_V0")
    A("s_cmp_eq_u32 s59, 0\ns_cbranch_scc0 L_gs1")
    global_stats(A, 1)
    A.label("L_gs1")
    pass
    A("s_mov_b32 s15, 0")
    A.label("L_V1")
    for par in range(2):
        A(f"s_cmp_eq_u32 s59, 0\ns_cbranch_scc0 L_V1_w{par}")
        A(f"s_waitcnt vmcnt(41)\nv_readfirstlane_b32 s64, v{122+par}\ns_nop 3")
        A("s_mul_i32 s65, s64, 43\ns_lshr_b32 s65, s65, 8\ns_mul_i32 s68, s65, 6\ns_sub_u32 s68, s64, s68\ns_lshl_b32 s65, s65, 3\ns_add_u32 s65, s65, s68\ns_add_u32 s65, s65, 2")
        A("s_cmp_lt_u32 s64, 24\ns_cselect_b32 s65, s65, 32")
        A(f"v_mov_b32 v5, s65\nv_mov_b32 v6, 0\ns_mov_b64 exec, 1\nds_write_b32 v6, v5 offset:{L_IDS + 4*par}\ns_mov_b64 exec, -1")
        grab_id(A, 122 + par)
        A.label(f"L_V1_w{par}")
        A("s_waitcnt lgkmcnt(0)\ns_barrier")
        A("s_cmp_ge_u32 s12, 32\ns_cbranch_scc1 L_V1_done")
        A(f"v_mov_b32 v6, 0\nds_read_b32 v5, v6 offset:{L_IDS + 4*par}")
        A("s_cmp_eq_u32 s15, 0\ns_cbranch_scc0 L_V1_ng%d" % par)
        A(f"ds_read_b64 v[30:31], v6 offset:{L_GST + 8}")
        A.label("L_V1_ng%d" % par)
        A("s_waitcnt vmcnt(36) lgkmcnt(0)\nv_readfirstlane_b32 s14, v5")
        R = 64 + 16 * par
        for e in range(16):
            A(f"v_sub_f32 v{32+e}, v{R+e}, v30")
        for e in range(16):
            A(f"v_mul_f32 v{32+e}, s83, v{32+e}")
        for e in range(16):
            A(f"v_exp_f32 v{32+e}, v{32+e}")
        A("v_mov_b32 v6, 0")
        for e in range(16):
            A(f"v_mul_f32 v{32+e}, v{32+e}, v31")
        for e in range(16):
            A(f"v_cvt_pk_bf16_f32 v{32+e}, v{32+e}, v6")
        score_loads(A, 14, R)
        A("s_mul_i32 s62, s14, 98304\ns_add_u32 s62, s62, s8")
        A(f"s_cmp_lt_u32 s14, 32\ns_cselect_b32 s54, {KV_BYTES}, 0")
        for jj in range(16):
            v_slot(A, 16 * par + jj, 20, p=32 + jj)
        A("s_mov_b32 s12, s13\ns_mov_b32 s13, s14\ns_add_u32 s15, s15, 1")
    A("s_branch L_V1")
    A.label("L_V1_done")
    A("s_waitcnt vmcnt(0)")
    stamp(A)
    A("s_mul_i32 s64, s56, 192\ns_mul_i32 s68, s59, 24\ns_add_u32 s64, s64, s68\ns_mul_i32 s64, s64, 1280")
    A("v_lshlrev_b32 v5, 4, v1\nv_lshlrev_b32 v6, 2, v1")
    for ii in range(24):
        A(f"buffer_load_dwordx4 v[{32+4*ii}:{35+4*ii}], v5, s[40:43], s64 offen")
        A(f"buffer_load_dword v{128+ii}, v6, s[40:43], s64 offen offset:1024")
        A("s_add_u32 s64, s64, 1280")
    cross_wave_reduce_192(A, "o")
    if DEBUG:
        A(f"v_lshlrev_b32 v5, 2, v0\nv_cmp_gt_u32 vcc, 384, v0\ns_and_saveexec_b64 s[64:65], vcc")
        A(f"ds_read_b32 v6, v5 offset:{L_OV}\ns_waitcnt lgkmcnt(0)")
        A(f"s_lshl_b32 s68, s2, 12\ns_add_u32 s68, s68, {WS_DBG + 2048}")
        A("buffer_store_dword v6, v5, s[48:51], s68 offen")
        A("s_mov_b64 exec, -1")
    stamp(A)
    A("s_mul_i32 s64, s59, 192\nv_mov_b32 v7, s64")
    for c in range(12):
        A(f"ds_read_b128 v[{176+4*c}:{179+4*c}], v7 offset:{L_OV + c*16}")
    for i in range(20):
        A(f"v_mov_b32 v{224+i}, 0")
    A("s_waitcnt vmcnt(0) lgkmcnt(0)")
    for ii in range(24):
        o0 = 176 + 2 * ii
        for e in range(5):
            w = (32 + 4 * ii + e) if e < 4 else (128 + ii)
            A(f"v_lshlrev_b32 v5, 16, v{w}\nv_and_b32 v6, 0xffff0000, v{w}")
            A(f"v_fmac_f32 v{224+2*e}, v5, v{o0}\nv_fmac_f32 v{225+2*e}, v6, v{o0}")
            A(f"v_fmac_f32 v{234+2*e}, v5, v{o0+1}\nv_fmac_f32 v{235+2*e}, v6, v{o0+1}")
    stamp(A)
    A("s_mul_i32 s64, s59, 5120\nv_lshlrev_b32 v5, 5, v1\nv_add_u32 v5, s64, v5\nv_lshlrev_b32 v6, 3, v1\nv_add_u32 v6, s64, v6")
    for tau in range(2):
        A(f"ds_write_b128 v5, v[{224+10*tau}:{227+10*tau}] offset:{L_OUTP + tau*2560}")
        A(f"ds_write_b128 v5, v[{228+10*tau}:{231+10*tau}] offset:{L_OUTP + tau*2560 + 16}")
        A(f"ds_write_b64 v6, v[{232+10*tau}:{233+10*tau}] offset:{L_OUTP + tau*2560 + 2048}")
    A("s_waitcnt lgkmcnt(0)\ns_barrier")
    A(f"s_mul_i32 s64, s57, 5120\ns_add_u32 s64, s64, {WS_HACC}\nv_lshlrev_b32 v5, 2, v0")
    for k in range(3):
        for w in range(8):
            A(f"ds_read_b32 v{8+8*k+w}, v5 offset:{L_OUTP + k*2048 + w*5120}")
    A("s_waitcnt lgkmcnt(0)")
    for k in range(3):
        r = 8 + 8 * k
        for w in range(4):
            A(f"v_add_f32 v{r+w}, v{r+w}, v{r+4+w}")
        A(f"v_add_f32 v{r}, v{r}, v{r+2}\nv_add_f32 v{r+1}, v{r+1}, v{r+3}\nv_add_f32 v{r}, v{r}, v{r+1}")
    A("buffer_atomic_add_f32 v8, v5, s[48:51], s64 offen")
    A("buffer_atomic_add_f32 v16, v5, s[48:51], s64 offen offset:2048")
    A("v_cmp_gt_u32 vcc, 256, v0\ns_and_saveexec_b64 s[66:67], vcc\ns_cbranch_execz L_endA2")
    A("s_add_u32 s64, s64, 4096\ns_nop 3")
    A("buffer_atomic_add_f32 v24, v5, s[48:51], s64 offen")
    A.label("L_endA2")
    A("s_mov_b64 exec, -1")
    stamp(A)
    if FUSED:
        import gen_mlp
        gen_mlp.gen_mlp_fused(A)
    stamp_dump(A, WS_DBG + 0x200000)
    A.label("L_endA")
    A("s_endpgm")


def layernorm10(A, x, t):
    s, u, m, vv, r = t, t + 1, t + 2, t + 3, t + 4
    A(f"v_add_f32 v{s}, v{x}, v{x+1}")
    for e in range(2, 10):
        A(f"v_add_f32 v{s}, v{s}, v{x+e}")
    wave_reduce(A, "add", s, u)
    A(f"v_mul_f32 v{m}, {INV640:#x}, v{s}")
    A(f"v_sub_f32 v{u}, v{x}, v{m}\nv_mul_f32 v{s}, v{u}, v{u}")
    for e in range(1, 10):
        A(f"v_sub_f32 v{u}, v{x+e}, v{m}\nv_fmac_f32 v{s}, v{u}, v{u}")
    wave_reduce(A, "add", s, u)
    A(f"v_mul_f32 v{vv}, {INV640:#x}, v{s}")
    rne(A, m)
    rne(A, vv)
    A(f"v_add_f32 v{vv}, {EPS:#x}, v{vv}")
    rne(A, vv)
    A(f"v_sqrt_f32 v{vv}, v{vv}\ns_nop 0")
    rne(A, vv)
    A(f"v_rcp_f32 v{r}, v{vv}\ns_nop 0")
    for e in range(10):
        A(f"v_sub_f32 v{x+e}, v{x+e}, v{m}")
        rne(A, x + e)
        A(f"v_mul_f32 v{s}, v{x+e}, v{r}")
        A(f"v_fma_f32 v{u}, -v{s}, v{vv}, v{x+e}")
        A(f"v_fma_f32 v{x+e}, v{u}, v{r}, v{s}")
        rne(A, x + e)


def cross_wave_reduce_192(A, kind):
    A("v_lshrrev_b32 v5, 5, v1\ns_lshl_b32 s64, s59, 1\nv_add_u32 v5, s64, v5\nv_mul_u32_u24 v5, 768, v5")
    A("v_and_b32 v6, 31, v1\nv_mul_u32_u24 v6, 24, v6\nv_add_u32 v5, v5, v6")
    for tau in range(2):
        for e in range(3):
            A(f"ds_write_b64 v5, v[{14+6*tau+2*e}:{15+6*tau+2*e}] offset:{L_QR + tau*12288 + e*8}")
    A("s_waitcnt lgkmcnt(0)\ns_barrier")
    A("v_cmp_gt_u32 vcc, 384, v0\ns_and_saveexec_b64 s[64:65], vcc")
    A(f"s_cbranch_execz L_cw_{kind}")
    A("v_cmp_le_u32 vcc, 192, v0\nv_mov_b32 v6, 0\nv_mov_b32 v5, 11520\ns_nop 0\nv_cndmask_b32 v6, v6, v5, vcc")
    A("v_lshlrev_b32 v5, 2, v0\nv_add_u32 v5, v5, v6")
    T = 112 if kind == "q" else 240
    for s in range(16):
        A(f"ds_read_b32 v{T+s}, v5 offset:{L_QR + s*768}")
    A("s_waitcnt lgkmcnt(0)")
    for s in range(8):
        A(f"v_add_f32 v{T+s}, v{T+s}, v{T+8+s}")
    for s in range(4):
        A(f"v_add_f32 v{T+s}, v{T+s}, v{T+4+s}")
    A(f"v_add_f32 v{T}, v{T}, v{T+2}\nv_add_f32 v{T+1}, v{T+1}, v{T+3}\nv_add_f32 v{T}, v{T}, v{T+1}")
    if kind == "q":
        A(f"v_cvt_pk_bf16_f32 v{T}, v{T}, v{T}\nv_lshlrev_b32 v5, 1, v0")
        A(f"ds_write_b16 v5, v{T} offset:{L_QB}")
    else:
        A(f"v_lshlrev_b32 v5, 3, v0\nv_mov_b32 v6, 0\nv_mov_b32 v{T+1}, 1532\nv_cndmask_b32 v6, v6, v{T+1}, vcc\nv_sub_u32 v5, v5, v6")
        A(f"ds_write_b32 v5, v{T} offset:{L_OV}")
    A.label(f"L_cw_{kind}")
    A("s_mov_b64 exec, -1")
    A("s_waitcnt lgkmcnt(0)\ns_barrier")


def kd(name, vgpr, sgpr=100):
    return f""".amdhsa_kernel {name}
  .amdhsa_next_free_vgpr {vgpr}
  .amdhsa_next_free_sgpr {sgpr}
  .amdhsa_accum_offset {vgpr}
  .amdhsa_group_segment_fixed_size 0
  .amdhsa_kernarg_size 104
  .amdhsa_user_sgpr_count 2
  .amdhsa_user_sgpr_kernarg_segment_ptr 1
  .amdhsa_system_sgpr_workgroup_id_x 1
.end_amdhsa_kernel
"""


HEADER = """; Kernarg layout for this problem (104 bytes, ptrs only, base s[0:1]):
;   offset  88: d_debug   256 bytes
"""


def main():
    global DEBUG, TIMING
    out = sys.argv[1] if len(sys.argv) > 1 else f"cdna_kernels/{NAME}.s"
    DEBUG = len(sys.argv) > 2 and sys.argv[2] == "debug"
    TIMING = len(sys.argv) > 2 and sys.argv[2] == "timing"
    only_a = len(sys.argv) > 3 and sys.argv[3] == "A"
    A = Asm()
    A.raw(HEADER.rstrip())
    import gen_mlp
    only_a = only_a or FUSED
    A.raw(f"; @launch kernel=attn_kernel grid=(256,1,1) block=(512,1,1) lds={max(L_END_A, gen_mlp.F_END) if FUSED else L_END_A}")
    if not only_a:
        A.raw(gen_mlp.launch_line())
    A.raw('.amdgcn_target "amdgcn-amd-amdhsa--gfx950"\n.text')
    gen_attn(A)
    if not only_a:
        gen_mlp.gen_mlp(A, DEBUG)
    A.raw('.section .rodata,"a"\n.p2align 6')
    A.raw(kd("attn_kernel", 256))
    if not only_a:
        A.raw(".p2align 6")
        A.raw(gen_mlp.kd())
    open(out, "w").write(A.text())


if __name__ == "__main__":
    import gen as _g
    _g.main()
```

```python
from gen import stamp, stamp_dump, srd, rne, wave_reduce, layernorm10, WS_HACC, WS_YACC, WS_SIZE, WS_DBG, LOG2E
import gen

NWG_B = 48
L_XN2 = 0
L_H = 10240
L_GU = 20480
L_ACT = 21504
L_SIG = 22016
L_FLAG = 22032
L_GUP = 22528
L_YR = 30720
L_END_B = 30720 + 81920

WG_BYTES = 640 * 1536 * 2


def launch_line():
    return f"; @launch kernel=mlp_kernel grid=({NWG_B},1,1) block=(1024,1,1) lds={L_END_B}"


def kd():
    return gen.kd("mlp_kernel", 128)


def sigmoid_mul(A, x, out, t):
    A(f"v_mul_f32 v{t}, s83, v{x}\nv_sub_f32 v{t}, 0, v{t}\nv_exp_f32 v{t}, v{t}\ns_nop 0\nv_add_f32 v{t}, 1.0, v{t}\nv_rcp_f32 v{out}, v{t}\ns_nop 0")
    A(f"v_fma_f32 v{t}, -v{t}, v{out}, 1.0\nv_fma_f32 v{out}, v{t}, v{out}, v{out}")


def reduce32(A, R):
    A("s_nop 1")
    for a in range(16):
        A(f"v_permlane32_swap_b32 v{R[a]}, v{R[a+16]}")
    A("s_nop 0")
    for a in range(16):
        A(f"v_add_f32 v{R[a]}, v{R[a]}, v{R[a+16]}")
    A("s_nop 1")
    for a in range(8):
        A(f"v_permlane16_swap_b32 v{R[a]}, v{R[a+8]}")
    A("s_nop 0")
    for a in range(8):
        A(f"v_add_f32 v{R[a]}, v{R[a]}, v{R[a+8]}")
    A("s_nop 1")
    for a in range(4):
        A(f"v_add_f32_dpp v{R[a]}, v{R[a]}, v{R[a]} row_ror:8 row_mask:0xf bank_mask:0x3")
    for a in range(4):
        A(f"v_add_f32_dpp v{R[a]}, v{R[a+4]}, v{R[a+4]} row_ror:8 row_mask:0xf bank_mask:0xc")
    A("s_nop 1")
    for a in range(2):
        A(f"v_add_f32_dpp v{R[a]}, v{R[a]}, v{R[a]} row_shl:4 row_mask:0xf bank_mask:0x5")
    for a in range(2):
        A(f"v_add_f32_dpp v{R[a]}, v{R[a+2]}, v{R[a+2]} row_shr:4 row_mask:0xf bank_mask:0xa")


def gen_mlp(A, debug=False):
    A.raw(".globl mlp_kernel\n.p2align 8\n.type mlp_kernel,@function\nmlp_kernel:")
    A(f"s_cmp_ge_u32 s2, {NWG_B}\ns_cbranch_scc1 L_endB")
    A("s_load_dwordx2 s[8:9], s[0:1], 0")
    A("s_load_dwordx8 s[12:19], s[0:1], 48")
    A("s_load_dwordx4 s[20:23], s[0:1], 80")
    A("s_load_dwordx2 s[10:11], s[0:1], 96")
    A("v_and_b32 v1, 63, v0\nv_lshrrev_b32 v5, 6, v0\ns_nop 0\nv_readfirstlane_b32 s59, v5")
    A(f"s_mov_b32 s83, {LOG2E:#x}")
    A("s_waitcnt lgkmcnt(0)")
    stamp(A)
    srd(A, 24, 8, 9, 5120)
    srd(A, 28, 12, 13, 1280)
    srd(A, 32, 14, 15, WG_BYTES)
    srd(A, 36, 16, 17, WG_BYTES)
    srd(A, 40, 18, 19, WG_BYTES)
    srd(A, 44, 22, 23, 256)
    srd(A, 48, 10, 11, WS_SIZE)
    srd(A, 72, 20, 21, 5120)
    A("s_cmp_lt_u32 s59, 4\ns_cbranch_scc0 L_b_noln0")
    A(f"s_mul_i32 s64, s59, 2560\ns_add_u32 s64, s64, {WS_HACC}\ns_mul_i32 s65, s59, 1280")
    A("v_lshlrev_b32 v5, 5, v1\nv_lshlrev_b32 v6, 3, v1\nv_lshlrev_b32 v7, 4, v1\nv_lshlrev_b32 v8, 2, v1")
    A("buffer_load_dwordx4 v[100:103], v5, s[48:51], s64 offen")
    A("buffer_load_dwordx4 v[104:107], v5, s[48:51], s64 offen offset:16")
    A("buffer_load_dwordx2 v[108:109], v6, s[48:51], s64 offen offset:2048")
    A("buffer_load_dwordx4 v[110:113], v7, s[24:27], s65 offen")
    A("buffer_load_dword v114, v8, s[24:27], s65 offen offset:1024")
    A("buffer_load_dwordx4 v[116:119], v7, s[28:31], 0 offen")
    A("buffer_load_dword v120, v8, s[28:31], 0 offen offset:1024")
    A.label("L_b_noln0")
    A("s_and_b32 s60, s59, 1\ns_lshr_b32 s61, s59, 1")
    A("s_cmp_eq_u32 s60, 0\ns_cselect_b32 s52, s32, s36\ns_cselect_b32 s53, s33, s37\ns_mov_b32 s54, s34\ns_mov_b32 s55, s35")
    A("v_lshrrev_b32 v5, 2, v1\nv_mul_u32_u24 v5, 3072, v5\nv_and_b32 v6, 3, v1\nv_lshlrev_b32 v6, 4, v6\nv_add_u32 v9, v5, v6")
    A("s_mul_i32 s64, s61, 49152\ns_lshl_b32 s65, s2, 6\ns_add_u32 s64, s64, s65")
    for i in range(5):
        A(f"buffer_load_dwordx4 v[{32+4*i}:{35+4*i}], v9, s[52:55], s64 offen\ns_add_u32 s64, s64, {128*3072}")
    A("s_cmp_lt_u32 s59, 8\ns_cbranch_scc0 L_b_nodown0")
    A("s_lshl_b32 s64, s2, 5\ns_lshl_b32 s65, s59, 2\ns_add_u32 s64, s64, s65\ns_mul_i32 s64, s64, 1280")
    A("v_lshlrev_b32 v7, 4, v1\nv_lshlrev_b32 v8, 2, v1")
    for ii in range(4):
        A(f"buffer_load_dwordx4 v[{52+4*ii}:{55+4*ii}], v7, s[40:43], s64 offen")
        A(f"buffer_load_dword v{68+ii}, v8, s[40:43], s64 offen offset:1024")
        A("s_add_u32 s64, s64, 1280")
    A.label("L_b_nodown0")
    A("s_cmp_lt_u32 s59, 4\ns_cbranch_scc0 L_b_noln1")
    A("s_waitcnt vmcnt(13)")
    for e in range(10):
        rne(A, 100 + e)
    for e in range(4):
        A(f"v_lshlrev_b32 v{12+2*e}, 16, v{110+e}\nv_and_b32 v{13+2*e}, 0xffff0000, v{110+e}")
    A("v_lshlrev_b32 v20, 16, v114\nv_and_b32 v21, 0xffff0000, v114")
    for e in range(10):
        A(f"v_add_f32 v{12+e}, v{12+e}, v{100+e}")
        rne(A, 12 + e)
    A("s_mul_i32 s64, s59, 2560\nv_lshlrev_b32 v5, 5, v1\nv_add_u32 v5, s64, v5\nv_lshlrev_b32 v6, 3, v1\nv_add_u32 v6, s64, v6")
    A(f"ds_write_b128 v5, v[12:15] offset:{L_H}")
    A(f"ds_write_b128 v5, v[16:19] offset:{L_H+16}")
    A(f"ds_write_b64 v6, v[20:21] offset:{L_H+2048}")
    A("s_nop 1")
    layernorm10(A, 12, 22)
    A("s_lshl_b32 s64, s59, 2\nv_lshlrev_b32 v5, 7, v1\nv_add_u32 v5, s64, v5\nv_lshlrev_b32 v6, 5, v1\nv_add_u32 v6, s64, v6")
    for e in range(8):
        A(f"ds_write_b32 v5, v{12+e} offset:{L_XN2 + e*16}")
    for e in range(2):
        A(f"ds_write_b32 v6, v{20+e} offset:{L_XN2 + 8192 + e*16}")
    for e in range(4):
        A(f"v_lshlrev_b32 v{100+2*e}, 16, v{116+e}\nv_and_b32 v{101+2*e}, 0xffff0000, v{116+e}")
    A("v_lshlrev_b32 v108, 16, v120\nv_and_b32 v109, 0xffff0000, v120")
    A("v_mul_f32 v22, v12, v100")
    for e in range(1, 10):
        A(f"v_fmac_f32 v22, v{12+e}, v{100+e}")
    wave_reduce(A, "add", 22, 23)
    rne(A, 22)
    sigmoid_mul(A, 22, 24, 23)
    rne(A, 24)
    A(f"v_mov_b32 v5, s64\ns_mov_b64 exec, 1\nds_write_b32 v5, v24 offset:{L_SIG}\ns_mov_b64 exec, -1")
    A.label("L_b_noln1")
    A("s_waitcnt lgkmcnt(0)\ns_barrier")
    stamp(A)
    A("s_lshl_b32 s64, s61, 8\nv_lshrrev_b32 v5, 2, v1\nv_lshlrev_b32 v5, 4, v5\nv_add_u32 v5, s64, v5")
    for i in range(5):
        A(f"ds_read_b128 v[{72+4*i}:{75+4*i}], v5 offset:{L_XN2 + i*2048}")
    for a in range(32):
        A(f"v_mov_b32 v{96+a}, 0")
    A("s_waitcnt vmcnt(8) lgkmcnt(0)")
    A("s_cmp_lt_u32 s59, 8\ns_cbranch_scc1 L_b_w8\ns_waitcnt vmcnt(0)")
    A.label("L_b_w8")
    for i in range(5):
        for e in range(4):
            w = 32 + 4 * i + e
            A(f"v_lshlrev_b32 v5, 16, v{w}\nv_and_b32 v6, 0xffff0000, v{w}")
            for b in range(4):
                A(f"v_fmac_f32 v{96+8*b+2*e}, v5, v{72+4*i+b}\nv_fmac_f32 v{97+8*b+2*e}, v6, v{72+4*i+b}")
    R = [96 + a for a in range(32)]
    reduce32(A, R)
    A("v_lshrrev_b32 v5, 4, v1\nv_lshlrev_b32 v5, 7, v5\nv_and_b32 v6, 3, v1\nv_lshlrev_b32 v6, 5, v6\nv_add_u32 v5, v5, v6")
    A("v_bfe_u32 v6, v1, 2, 2\nv_lshlrev_b32 v6, 3, v6\nv_add_u32 v5, v5, v6\ns_lshl_b32 s64, s60, 9\nv_add_u32 v5, s64, v5")
    A("s_lshl_b32 s64, s61, 10\nv_add_u32 v5, s64, v5")
    A(f"ds_write_b64 v5, v[{R[0]}:{R[1]}] offset:{L_GUP}")
    A("s_waitcnt lgkmcnt(0)\ns_barrier")
    stamp(A)
    A("s_cmp_lt_u32 s59, 2\ns_cbranch_scc0 L_b_noact")
    A("v_lshlrev_b32 v5, 2, v0")
    for w in range(8):
        A(f"ds_read_b32 v{32+w}, v5 offset:{L_GUP + w*1024}\nds_read_b32 v{40+w}, v5 offset:{L_GUP + 512 + w*1024}")
    A("s_waitcnt lgkmcnt(0)")
    for base, dst in ((32, 12), (40, 13)):
        for w in range(4):
            A(f"v_add_f32 v{base+w}, v{base+w}, v{base+4+w}")
        A(f"v_add_f32 v{base}, v{base}, v{base+2}\nv_add_f32 v{base+1}, v{base+1}, v{base+3}\nv_add_f32 v{dst}, v{base}, v{base+1}")
    rne(A, 12)
    rne(A, 13)
    sigmoid_mul(A, 12, 14, 15)
    A("v_mul_f32 v14, v14, v12")
    rne(A, 14)
    A("v_mul_f32 v14, v14, v13")
    rne(A, 14)
    A("v_and_b32 v5, 31, v0\nv_lshlrev_b32 v5, 4, v5\nv_lshrrev_b32 v6, 5, v0\nv_lshlrev_b32 v6, 2, v6\nv_add_u32 v5, v5, v6")
    A(f"ds_write_b32 v5, v14 offset:{L_ACT}")
    A.label("L_b_noact")
    A("s_waitcnt lgkmcnt(0)\ns_barrier")
    stamp(A)
    A("s_cmp_lt_u32 s59, 8\ns_cbranch_scc0 L_b_nodown1")
    A("s_lshl_b32 s64, s59, 6\nv_mov_b32 v5, s64")
    for ii in range(4):
        A(f"ds_read_b128 v[{72+4*ii}:{75+4*ii}], v5 offset:{L_ACT + ii*16}")
    for a in range(40):
        A(f"v_mov_b32 v{88+a}, 0")
    A("s_waitcnt vmcnt(0) lgkmcnt(0)")
    for ii in range(4):
        for e in range(5):
            w = (52 + 4 * ii + e) if e < 4 else (68 + ii)
            A(f"v_lshlrev_b32 v5, 16, v{w}\nv_and_b32 v6, 0xffff0000, v{w}")
            for b in range(4):
                A(f"v_fmac_f32 v{88+10*b+2*e}, v5, v{72+4*ii+b}\nv_fmac_f32 v{89+10*b+2*e}, v6, v{72+4*ii+b}")
    A("s_mul_i32 s64, s59, 10240\nv_lshlrev_b32 v5, 5, v1\nv_add_u32 v5, s64, v5\nv_lshlrev_b32 v6, 3, v1\nv_add_u32 v6, s64, v6")
    for b in range(4):
        A(f"ds_write_b128 v5, v[{88+10*b}:{91+10*b}] offset:{L_YR + b*2560}")
        A(f"ds_write_b128 v5, v[{92+10*b}:{95+10*b}] offset:{L_YR + b*2560 + 16}")
        A(f"ds_write_b64 v6, v[{96+10*b}:{97+10*b}] offset:{L_YR + b*2560 + 2048}")
    A.label("L_b_nodown1")
    A("s_waitcnt lgkmcnt(0)\ns_barrier")
    stamp(A)
    A(f"s_mov_b32 s64, {WS_YACC}\nv_lshlrev_b32 v5, 2, v0")
    for k in range(3):
        A(f"v_add_u32 v6, {L_YR + k*4096}, v5")
        for w in range(8):
            A(f"ds_read_b32 v{32+8*k+w}, v6 offset:{w*10240 if w < 6 else 0}" if w < 6 else
              f"v_add_u32 v7, {w*10240}, v6\nds_read_b32 v{32+8*k+w}, v7")
    A("s_waitcnt lgkmcnt(0)")
    for k in range(3):
        r = 32 + 8 * k
        for w in range(4):
            A(f"v_add_f32 v{r+w}, v{r+w}, v{r+4+w}")
        A(f"v_add_f32 v{r}, v{r}, v{r+2}\nv_add_f32 v{r+1}, v{r+1}, v{r+3}\nv_add_f32 v{12+k}, v{r}, v{r+1}")
    A("buffer_atomic_add_f32 v12, v5, s[48:51], s64 offen")
    A(f"s_mov_b32 s64, {WS_YACC+4096}\ns_nop 0")
    A("buffer_atomic_add_f32 v13, v5, s[48:51], s64 offen")
    A("s_cmp_lt_u32 s59, 8\ns_cbranch_scc0 L_b_noat")
    A(f"s_mov_b32 s64, {WS_YACC+8192}\ns_nop 0")
    A("buffer_atomic_add_f32 v14, v5, s[48:51], s64 offen")
    A.label("L_b_noat")
    A("s_waitcnt vmcnt(0)\ns_barrier")
    stamp(A)
    A("s_cmp_eq_u32 s59, 0\ns_cbranch_scc0 L_b_noctr")
    A("v_mov_b32 v5, 1\nv_mov_b32 v6, 0\ns_mov_b64 exec, 1")
    A("buffer_atomic_add v5, v6, s[44:47], 0 offen sc0 sc1")
    A("s_waitcnt vmcnt(0)")
    A(f"ds_write_b32 v6, v5 offset:{L_FLAG}")
    A("s_mov_b64 exec, -1")
    A.label("L_b_noctr")
    A("s_waitcnt lgkmcnt(0)\ns_barrier")
    A(f"v_mov_b32 v6, 0\nds_read_b32 v5, v6 offset:{L_FLAG}\ns_waitcnt lgkmcnt(0)\nv_readfirstlane_b32 s64, v5\ns_nop 3")
    stamp(A)
    stamp_dump(A, WS_DBG + 0x300000)
    A(f"s_cmp_eq_u32 s64, {NWG_B-1}\ns_cbranch_scc0 L_endB")
    for k in range(3):
        if k == 2:
            A("s_cmp_lt_u32 s59, 8\ns_cbranch_scc0 L_endB")
        A(f"v_add_u32 v20, {1024*k}, v0")
        A(f"v_lshlrev_b32 v5, 2, v20\ns_mov_b32 s64, {WS_YACC}\ns_nop 0")
        A("buffer_load_dword v12, v5, s[48:51], s64 offen sc0 sc1")
        A(f"ds_read_b32 v13, v5 offset:{L_H}")
        A("v_mov_b32 v6, 0")
        for th in (640, 1280, 1920):
            A(f"v_cmp_le_u32 vcc, {th}, v20\ns_nop 1\nv_addc_co_u32 v6, vcc, 0, v6, vcc")
        A("v_mul_u32_u24 v7, 640, v6\nv_sub_u32 v7, v20, v7")
        A("v_lshlrev_b32 v7, 4, v7\nv_lshlrev_b32 v6, 2, v6\nv_add_u32 v7, v7, v6")
        A(f"ds_read_b32 v14, v7 offset:{L_XN2}\nds_read_b32 v15, v6 offset:{L_SIG}")
        A("s_waitcnt vmcnt(0) lgkmcnt(0)")
        rne(A, 12)
        A("v_mul_f32 v12, v12, v15")
        rne(A, 12)
        A("v_add_f32 v12, v12, v14")
        rne(A, 12)
        A("v_add_f32 v12, v12, v13")
        A("v_cvt_pk_bf16_f32 v12, v12, v12\nv_lshlrev_b32 v5, 1, v20")
        A("buffer_store_short v12, v5, s[72:75], 0 offen")
    A.label("L_endB")
    A("s_endpgm")


F_XN2 = 0
F_H = 10240
F_GUP = 20480
F_ACT = 24576
F_SIG = 25088
F_FLAG = 25104
F_YR = 25600
F_END = 25600 + 81920


def gen_mlp_fused(A):
    A("s_load_dwordx8 s[12:19], s[0:1], 48")
    A("s_load_dwordx2 s[20:21], s[0:1], 80")
    A("s_mov_b64 exec, -1")
    A(f"s_cmp_lt_u32 s2, {NWG_B}\ns_cbranch_scc1 L_f_worker")
    A("s_waitcnt vmcnt(0) lgkmcnt(0)\ns_barrier")
    A("s_cmp_eq_u32 s59, 0\ns_cbranch_scc0 L_f_end")
    A("v_mov_b32 v5, 1\nv_mov_b32 v6, 0\ns_mov_b64 exec, 1")
    A("buffer_atomic_add v5, v6, s[44:47], 0 offen offset:200 sc1")
    A("s_branch L_f_end")
    A.label("L_f_worker")
    A("s_waitcnt lgkmcnt(0)")
    srd(A, 28, 12, 13, 1280)
    srd(A, 32, 14, 15, WG_BYTES)
    srd(A, 36, 16, 17, WG_BYTES)
    srd(A, 40, 18, 19, WG_BYTES)
    srd(A, 72, 20, 21, 5120)
    A("s_and_b32 s60, s59, 1\ns_lshr_b32 s61, s59, 1")
    A("s_cmp_eq_u32 s60, 0\ns_cselect_b32 s52, s32, s36\ns_cselect_b32 s53, s33, s37\ns_mov_b32 s54, s34\ns_mov_b32 s55, s35")
    A("v_lshrrev_b32 v5, 2, v1\nv_mul_u32_u24 v5, 3072, v5\nv_and_b32 v6, 3, v1\nv_lshlrev_b32 v6, 4, v6\nv_add_u32 v9, v5, v6")
    A("s_mul_i32 s64, s61, 49152\ns_lshl_b32 s65, s2, 6\ns_add_u32 s64, s64, s65")
    for i in range(10):
        A(f"buffer_load_dwordx4 v[{32+4*i}:{35+4*i}], v9, s[52:55], s64 offen\ns_add_u32 s64, s64, {64*3072}")
    A("s_lshl_b32 s64, s2, 5\ns_lshl_b32 s65, s59, 2\ns_add_u32 s64, s64, s65\ns_mul_i32 s64, s64, 1280")
    A("v_lshlrev_b32 v7, 4, v1\nv_lshlrev_b32 v8, 2, v1")
    for ii in range(4):
        A(f"buffer_load_dwordx4 v[{72+4*ii}:{75+4*ii}], v7, s[40:43], s64 offen")
        A(f"buffer_load_dword v{88+ii}, v8, s[40:43], s64 offen offset:1024")
        A("s_add_u32 s64, s64, 1280")
    A("s_mul_i32 s65, s59, 1280")
    A("buffer_load_dwordx4 v[210:213], v7, s[24:27], s65 offen")
    A("buffer_load_dword v214, v8, s[24:27], s65 offen offset:1024")
    A("buffer_load_dwordx4 v[216:219], v7, s[28:31], 0 offen")
    A("buffer_load_dword v220, v8, s[28:31], 0 offen offset:1024")
    A("s_waitcnt vmcnt(22)\ns_barrier")
    stamp(A)
    A("s_cmp_eq_u32 s59, 0\ns_cbranch_scc0 L_f_w0done")
    A("v_mov_b32 v5, 1\nv_mov_b32 v6, 0\ns_mov_b64 exec, 1")
    A("buffer_atomic_add v5, v6, s[44:47], 0 offen offset:200 sc1")
    A("s_mov_b64 exec, -1")
    A.label("L_f_poll")
    A("buffer_load_dword v5, v6, s[44:47], 0 offen offset:200 sc0 sc1\ns_waitcnt vmcnt(0)\nv_readfirstlane_b32 s64, v5\ns_nop 3")
    A("s_cmp_eq_u32 s64, 256\ns_cbranch_scc1 L_f_w0done\ns_sleep 1\ns_branch L_f_poll")
    A.label("L_f_w0done")
    A("s_barrier")
    stamp(A)
    A("s_cmp_lt_u32 s59, 4\ns_cbranch_scc0 L_f_noln")
    A(f"s_mul_i32 s64, s59, 2560\ns_add_u32 s64, s64, {WS_HACC}")
    A("v_lshlrev_b32 v5, 5, v1\nv_lshlrev_b32 v6, 3, v1")
    A("buffer_load_dwordx4 v[200:203], v5, s[48:51], s64 offen sc0 sc1")
    A("buffer_load_dwordx4 v[204:207], v5, s[48:51], s64 offen offset:16 sc0 sc1")
    A("buffer_load_dwordx2 v[208:209], v6, s[48:51], s64 offen offset:2048 sc0 sc1")
    A("s_waitcnt vmcnt(0)")
    for e in range(10):
        rne(A, 200 + e)
    for e in range(4):
        A(f"v_lshlrev_b32 v{12+2*e}, 16, v{210+e}\nv_and_b32 v{13+2*e}, 0xffff0000, v{210+e}")
    A("v_lshlrev_b32 v20, 16, v214\nv_and_b32 v21, 0xffff0000, v214")
    for e in range(10):
        A(f"v_add_f32 v{12+e}, v{12+e}, v{200+e}")
        rne(A, 12 + e)
    A("s_mul_i32 s64, s59, 2560\nv_lshlrev_b32 v5, 5, v1\nv_add_u32 v5, s64, v5\nv_lshlrev_b32 v6, 3, v1\nv_add_u32 v6, s64, v6")
    A(f"ds_write_b128 v5, v[12:15] offset:{F_H}")
    A(f"ds_write_b128 v5, v[16:19] offset:{F_H+16}")
    A(f"ds_write_b64 v6, v[20:21] offset:{F_H+2048}")
    A("s_nop 1")
    layernorm10(A, 12, 22)
    A("s_lshl_b32 s64, s59, 2\nv_lshlrev_b32 v5, 7, v1\nv_add_u32 v5, s64, v5\nv_lshlrev_b32 v6, 5, v1\nv_add_u32 v6, s64, v6")
    for e in range(8):
        A(f"ds_write_b32 v5, v{12+e} offset:{F_XN2 + e*16}")
    for e in range(2):
        A(f"ds_write_b32 v6, v{20+e} offset:{F_XN2 + 8192 + e*16}")
    for e in range(4):
        A(f"v_lshlrev_b32 v{200+2*e}, 16, v{216+e}\nv_and_b32 v{201+2*e}, 0xffff0000, v{216+e}")
    A("v_lshlrev_b32 v208, 16, v220\nv_and_b32 v209, 0xffff0000, v220")
    A("v_mul_f32 v22, v12, v200")
    for e in range(1, 10):
        A(f"v_fmac_f32 v22, v{12+e}, v{200+e}")
    wave_reduce(A, "add", 22, 23)
    rne(A, 22)
    sigmoid_mul(A, 22, 24, 23)
    rne(A, 24)
    A(f"v_mov_b32 v5, s64\ns_mov_b64 exec, 1\nds_write_b32 v5, v24 offset:{F_SIG}\ns_mov_b64 exec, -1")
    A.label("L_f_noln")
    A("s_waitcnt lgkmcnt(0)\ns_barrier")
    stamp(A)
    A("s_lshl_b32 s64, s61, 8\nv_lshrrev_b32 v5, 2, v1\nv_lshlrev_b32 v5, 4, v5\nv_add_u32 v5, s64, v5")
    for i in range(10):
        A(f"ds_read_b128 v[{96+4*i}:{99+4*i}], v5 offset:{F_XN2 + i*1024}")
    for a in range(32):
        A(f"v_mov_b32 v{136+a}, 0")
    A("s_waitcnt vmcnt(0) lgkmcnt(0)")
    for i in range(10):
        for e in range(4):
            w = 32 + 4 * i + e
            A(f"v_lshlrev_b32 v5, 16, v{w}\nv_and_b32 v6, 0xffff0000, v{w}")
            for b in range(4):
                A(f"v_fmac_f32 v{136+8*b+2*e}, v5, v{96+4*i+b}\nv_fmac_f32 v{137+8*b+2*e}, v6, v{96+4*i+b}")
    reduce32(A, [136 + a for a in range(32)])
    A("v_lshrrev_b32 v5, 4, v1\nv_lshlrev_b32 v5, 7, v5\nv_and_b32 v6, 3, v1\nv_lshlrev_b32 v6, 5, v6\nv_add_u32 v5, v5, v6")
    A("v_bfe_u32 v6, v1, 2, 2\nv_lshlrev_b32 v6, 3, v6\nv_add_u32 v5, v5, v6\ns_lshl_b32 s64, s59, 9\nv_add_u32 v5, s64, v5")
    A(f"ds_write_b64 v5, v[136:137] offset:{F_GUP}")
    A("s_waitcnt lgkmcnt(0)\ns_barrier")
    stamp(A)
    A("s_cmp_lt_u32 s59, 2\ns_cbranch_scc0 L_f_noact")
    A("v_lshlrev_b32 v5, 2, v0")
    for w in range(4):
        A(f"ds_read_b32 v{32+w}, v5 offset:{F_GUP + w*1024}\nds_read_b32 v{40+w}, v5 offset:{F_GUP + 512 + w*1024}")
    A("s_waitcnt lgkmcnt(0)")
    for base, dst in ((32, 12), (40, 13)):
        A(f"v_add_f32 v{base}, v{base}, v{base+2}\nv_add_f32 v{base+1}, v{base+1}, v{base+3}\nv_add_f32 v{dst}, v{base}, v{base+1}")
    rne(A, 12)
    rne(A, 13)
    sigmoid_mul(A, 12, 14, 15)
    A("v_mul_f32 v14, v14, v12")
    rne(A, 14)
    A("v_mul_f32 v14, v14, v13")
    rne(A, 14)
    A("v_and_b32 v5, 31, v0\nv_lshlrev_b32 v5, 4, v5\nv_lshrrev_b32 v6, 5, v0\nv_lshlrev_b32 v6, 2, v6\nv_add_u32 v5, v5, v6")
    A(f"ds_write_b32 v5, v14 offset:{F_ACT}")
    A.label("L_f_noact")
    A("s_waitcnt lgkmcnt(0)\ns_barrier")
    stamp(A)
    A("s_lshl_b32 s64, s59, 6\nv_mov_b32 v5, s64")
    for ii in range(4):
        A(f"ds_read_b128 v[{96+4*ii}:{99+4*ii}], v5 offset:{F_ACT + ii*16}")
    for a in range(40):
        A(f"v_mov_b32 v{136+a}, 0")
    A("s_waitcnt lgkmcnt(0)")
    for ii in range(4):
        for e in range(5):
            w = (72 + 4 * ii + e) if e < 4 else (88 + ii)
            A(f"v_lshlrev_b32 v5, 16, v{w}\nv_and_b32 v6, 0xffff0000, v{w}")
            for b in range(4):
                A(f"v_fmac_f32 v{136+10*b+2*e}, v5, v{96+4*ii+b}\nv_fmac_f32 v{137+10*b+2*e}, v6, v{96+4*ii+b}")
    A("s_mul_i32 s64, s59, 10240\nv_lshlrev_b32 v5, 5, v1\nv_add_u32 v5, s64, v5\nv_lshlrev_b32 v6, 3, v1\nv_add_u32 v6, s64, v6")
    for b in range(4):
        A(f"ds_write_b128 v5, v[{136+10*b}:{139+10*b}] offset:{F_YR + b*2560}")
        A(f"ds_write_b128 v5, v[{140+10*b}:{143+10*b}] offset:{F_YR + b*2560 + 16}")
        A(f"ds_write_b64 v6, v[{144+10*b}:{145+10*b}] offset:{F_YR + b*2560 + 2048}")
    A("s_waitcnt lgkmcnt(0)\ns_barrier")
    A("v_lshlrev_b32 v5, 2, v0")
    for k in range(5):
        A(f"v_add_u32 v6, {F_YR + k*2048}, v5")
        for w in range(8):
            A(f"ds_read_b32 v{32+8*k+w}, v6 offset:{w*10240}" if w < 6 else
              f"v_add_u32 v7, {w*10240}, v6\nds_read_b32 v{32+8*k+w}, v7")
    A("s_waitcnt lgkmcnt(0)")
    for k in range(5):
        r = 32 + 8 * k
        for w in range(4):
            A(f"v_add_f32 v{r+w}, v{r+w}, v{r+4+w}")
        A(f"v_add_f32 v{r}, v{r}, v{r+2}\nv_add_f32 v{r+1}, v{r+1}, v{r+3}\nv_add_f32 v{r}, v{r}, v{r+1}")
        A(f"s_mov_b32 s64, {WS_YACC + k*2048}\ns_nop 0")
        A(f"buffer_atomic_add_f32 v{r}, v5, s[48:51], s64 offen")
    stamp(A)
    A("s_waitcnt vmcnt(0)\ns_barrier")
    stamp(A)
    A("s_cmp_eq_u32 s59, 0\ns_cbranch_scc0 L_f_noctr")
    A("v_mov_b32 v5, 1\nv_mov_b32 v6, 0\ns_mov_b64 exec, 1")
    A("buffer_atomic_add v5, v6, s[44:47], 0 offen offset:204 sc0 sc1")
    A("s_waitcnt vmcnt(0)")
    A(f"ds_write_b32 v6, v5 offset:{F_FLAG}")
    A("s_mov_b64 exec, -1")
    A.label("L_f_noctr")
    A("s_waitcnt lgkmcnt(0)\ns_barrier")
    A(f"v_mov_b32 v6, 0\nds_read_b32 v5, v6 offset:{F_FLAG}\ns_waitcnt lgkmcnt(0)\nv_readfirstlane_b32 s64, v5\ns_nop 3")
    A(f"s_cmp_eq_u32 s64, {NWG_B-1}\ns_cbranch_scc0 L_f_end")
    for k in range(5):
        A(f"v_add_u32 v{20+k}, {512*k}, v0\nv_lshlrev_b32 v5, 2, v{20+k}\ns_mov_b32 s64, {WS_YACC}\ns_nop 0")
        A(f"buffer_load_dword v{32+k}, v5, s[48:51], s64 offen sc0 sc1")
        A(f"ds_read_b32 v{40+k}, v5 offset:{F_H}")
        A("v_mov_b32 v6, 0")
        for th in (640, 1280, 1920):
            A(f"v_cmp_le_u32 vcc, {th}, v{20+k}\ns_nop 1\nv_addc_co_u32 v6, vcc, 0, v6, vcc")
        A(f"v_mul_u32_u24 v7, 640, v6\nv_sub_u32 v7, v{20+k}, v7")
        A("v_lshlrev_b32 v7, 4, v7\nv_lshlrev_b32 v6, 2, v6\nv_add_u32 v7, v7, v6")
        A(f"ds_read_b32 v{48+k}, v7 offset:{F_XN2}\nds_read_b32 v{56+k}, v6 offset:{F_SIG}")
    A("s_waitcnt vmcnt(0) lgkmcnt(0)")
    for k in range(5):
        r = 32 + k
        rne(A, r)
        A(f"v_mul_f32 v{r}, v{r}, v{56+k}")
        rne(A, r)
        A(f"v_add_f32 v{r}, v{r}, v{48+k}")
        rne(A, r)
        A(f"v_add_f32 v{r}, v{r}, v{40+k}")
        A(f"v_cvt_pk_bf16_f32 v{r}, v{r}, v{r}\nv_lshlrev_b32 v5, 1, v{20+k}")
        A(f"buffer_store_short v{r}, v5, s[72:75], 0 offen")
    A.label("L_f_end")
```

```python
import sys

NAME = "sequential_preLN__mha_block_cached__moe_arch_mod__decode"
DEBUG = False

KV_BYTES = 4 * 32 * 8192 * 192 * 2
W_BYTES = 640 * 6144 * 2

WS_HACC = 0x0000
WS_YACC = 0x4000
WS_STATS = 0x8000
WS_CTR = 0x10000
WS_SCG = 0x20000
WS_DBG = 0x400000
WS_SIZE = 0x1000000

L_S = 0
L_XNP = 16384
L_QR = 21504
L_QB = 46080
L_OV = 46848
L_WST = 48384
L_GST = 48512
L_IDS = 48576
L_OUTP = 0
L_END_A = 48640

SCALE = 0x3d93cd3a
LOG2E = 0x3fb8aa3b
INV640 = 0x3acccccd
EPS = 0x3727c5ac
NINF = 0xff800000


class Asm:
    def __init__(self):
        self.L = []

    def __call__(self, s):
        for line in s.split("\n"):
            line = line.strip()
            if line:
                self.L.append("  " + line)

    def label(self, l):
        self.L.append(l + ":")

    def raw(self, s):
        self.L.append(s)

    def text(self):
        return "\n".join(self.L) + "\n"


def srd(A, d, lo, hi, size):
    A(f"s_mov_b32 s{d}, s{lo}\ns_mov_b32 s{d+1}, s{hi}\ns_mov_b32 s{d+2}, {size}\ns_mov_b32 s{d+3}, 0x00020000")


def rne(A, r):
    A(f"v_cvt_pk_bf16_f32 v{r}, v{r}, v{r}\nv_lshlrev_b32 v{r}, 16, v{r}")


def wave_reduce(A, op, r, t, full=True):
    for dpp in ["quad_perm:[1,0,3,2]", "quad_perm:[2,3,0,1]", "row_half_mirror", "row_mirror"]:
        A(f"s_nop 1\nv_{op}_f32_dpp v{r}, v{r}, v{r} {dpp} row_mask:0xf bank_mask:0xf")
    A(f"v_mov_b32 v{t}, v{r}\ns_nop 1\nv_permlane16_swap_b32 v{r}, v{t}\ns_nop 1\nv_{op}_f32 v{r}, v{r}, v{t}")
    if full:
        A(f"v_mov_b32 v{t}, v{r}\ns_nop 1\nv_permlane32_swap_b32 v{r}, v{t}\ns_nop 1\nv_{op}_f32 v{r}, v{r}, v{t}")


TIMING = False
FUSED = True
_stamp_n = [0]
def stamp(A, dup=False):
    if not TIMING:
        return
    n = _stamp_n[0]; _stamp_n[0] += 1
    if dup:
        n -= 1; _stamp_n[0] -= 1
    assert n < 12, n
    A(f"s_memrealtime s[96:97]\ns_waitcnt lgkmcnt(0)\ns_mov_b32 s{84+n}, s96")


def stamp_dump(A, base):
    if not TIMING:
        return
    A(f"s_lshl_b32 s98, s2, 4\ns_add_u32 s98, s98, s59\ns_lshl_b32 s98, s98, 6\ns_add_u32 s98, s98, {base}")
    A("v_mov_b32 v6, 0\ns_mov_b64 exec, 1")
    for n in range(_stamp_n[0]):
        A(f"v_mov_b32 v5, s{84+n}\nbuffer_store_dword v5, v6, s[48:51], s98 offen offset:{4*n}")
    A("s_mov_b64 exec, -1")
    _stamp_n[0] = 0


SB = 128
D = 32


def WQR(j):
    return 32 + 4 * j if j < 24 else SB + 64 + 4 * (j - 24)


def stream_issue(A, j, nt=True):
    r = SB + 4 * j
    A(f"buffer_load_dwordx3 v[{r}:{r+2}], v2, s[52:55], s62 offen nt")
    A("s_add_u32 s62, s62, 6144")


def k_slot(A, j, q, reissue=True, wait=D - 1):
    r = SB + 4 * j
    A(f"s_waitcnt vmcnt({wait})")
    A(f"v_dot2_f32_bf16 v{r+3}, v{r}, v{q}, 0")
    A(f"v_dot2_f32_bf16 v{r+3}, v{r+1}, v{q+1}, v{r+3}")
    A(f"v_dot2_f32_bf16 v{r+3}, v{r+2}, v{q+2}, v{r+3}")
    if reissue:
        stream_issue(A, j)


def k_group_reduce(A, g, tau):
    P = [SB + 4 * (8 * g + i) + 3 for i in range(8)]
    A("s_nop 1")
    for k in range(4):
        A(f"v_permlane16_swap_b32 v{P[2*k]}, v{P[2*k+1]}")
    A("s_nop 0")
    for k in range(4):
        A(f"v_add_f32 v{P[2*k]}, v{P[2*k]}, v{P[2*k+1]}")
    B = [P[0], P[2], P[4], P[6]]
    A("s_nop 0")
    A(f"v_add_f32_dpp v{B[0]}, v{B[0]}, v{B[0]} row_ror:8 row_mask:0xf bank_mask:0x3")
    A(f"v_add_f32_dpp v{B[2]}, v{B[2]}, v{B[2]} row_ror:8 row_mask:0xf bank_mask:0x3")
    A(f"v_add_f32_dpp v{B[0]}, v{B[1]}, v{B[1]} row_ror:8 row_mask:0xf bank_mask:0xc")
    A(f"v_add_f32_dpp v{B[2]}, v{B[3]}, v{B[3]} row_ror:8 row_mask:0xf bank_mask:0xc")
    A("s_nop 1")
    A(f"v_add_f32_dpp v{B[0]}, v{B[0]}, v{B[0]} row_half_mirror row_mask:0xf bank_mask:0x5")
    A(f"v_add_f32_dpp v{B[0]}, v{B[2]}, v{B[2]} row_half_mirror row_mask:0xf bank_mask:0xa")
    A("s_nop 1")
    A(f"v_add_f32_dpp v{B[0]}, v{B[0]}, v{B[0]} quad_perm:[1,0,3,2] row_mask:0xf bank_mask:0xf")
    A("s_nop 1")
    A(f"v_add_f32_dpp v{B[0]}, v{B[0]}, v{B[0]} quad_perm:[2,3,0,1] row_mask:0xf bank_mask:0xf")
    r = B[0]
    A(f"v_cvt_pk_bf16_f32 v{r}, v{r}, v{r}")
    A(f"v_lshlrev_b32 v{r}, 16, v{r}")
    A(f"v_mul_f32 v{r}, s82, v{r}")
    A(f"v_cvt_pk_bf16_f32 v{r}, v{r}, v{r}")
    A(f"v_lshlrev_b32 v{r}, 16, v{r}")
    A(f"v_max_f32 v4, v4, v{r}")
    A("s_mov_b64 exec, s[80:81]")
    A(f"ds_write_b32 v3, v{r} offset:{L_S + tau*8192 + g*32}")
    A("s_mov_b64 exec, -1")


def v_slot(A, j, acc, reissue=True, wait=D - 1, p=None):
    r = SB + 4 * j
    if p is None:
        p = 32 + j
    t = 26 + (j & 1)
    A(f"s_waitcnt vmcnt({wait})")
    A(f"v_lshlrev_b32 v{t}, 16, v{p}")
    A(f"v_dot2c_f32_bf16 v{acc+0}, v{r}, v{p}")
    A(f"v_dot2c_f32_bf16 v{acc+2}, v{r+1}, v{p}")
    A(f"v_dot2c_f32_bf16 v{acc+4}, v{r+2}, v{p}")
    A(f"v_dot2c_f32_bf16 v{acc+1}, v{r}, v{t}")
    A(f"v_dot2c_f32_bf16 v{acc+3}, v{r+1}, v{t}")
    A(f"v_dot2c_f32_bf16 v{acc+5}, v{r+2}, v{t}")
    if reissue:
        stream_issue(A, j)


def local_stats(A, tau):
    A("s_waitcnt lgkmcnt(0)")
    A(f"ds_read_b128 v[28:31], v7 offset:{L_S + tau*8192}")
    wave_reduce(A, "max", 4, 5)
    A("s_waitcnt lgkmcnt(0)")
    for e in range(4):
        A(f"v_sub_f32 v{28+e}, v{28+e}, v4")
    for e in range(4):
        A(f"v_mul_f32 v{28+e}, s83, v{28+e}")
    for e in range(4):
        A(f"v_exp_f32 v{28+e}, v{28+e}")
    A("s_nop 0")
    A("v_add_f32 v28, v28, v29\nv_add_f32 v30, v30, v31\nv_add_f32 v5, v28, v30")
    wave_reduce(A, "add", 5, 6)
    A("s_lshl_b32 s64, s59, 3\nv_mov_b32 v6, s64")
    A("s_mov_b64 exec, 1")
    A(f"ds_write_b64 v6, v[4:5] offset:{L_WST + tau*64}")
    A("s_mov_b64 exec, -1")
    A(f"v_mov_b32 v4, {NINF:#x}")


def combine8(A, m, l, n_full):
    A(f"v_mov_b32 v5, v{m}")
    for dpp in ["quad_perm:[1,0,3,2]", "quad_perm:[2,3,0,1]", "row_half_mirror"][:n_full]:
        A(f"s_nop 1\nv_max_f32_dpp v5, v5, v5 {dpp} row_mask:0xf bank_mask:0xf")
    A(f"v_sub_f32 v{m}, v{m}, v5\nv_mul_f32 v{m}, s83, v{m}\nv_exp_f32 v{m}, v{m}\ns_nop 0\nv_mul_f32 v{l}, v{l}, v{m}")
    for dpp in ["quad_perm:[1,0,3,2]", "quad_perm:[2,3,0,1]", "row_half_mirror"][:n_full]:
        A(f"s_nop 1\nv_add_f32_dpp v{l}, v{l}, v{l} {dpp} row_mask:0xf bank_mask:0xf")
    A(f"v_mov_b32 v{m}, v5")


def wg_publish_payload(A, tau):
    A("v_and_b32 v6, 7, v1\nv_lshlrev_b32 v6, 3, v6")
    A(f"ds_read_b64 v[30:31], v6 offset:{L_WST + tau*64}\ns_waitcnt lgkmcnt(0)")
    combine8(A, 30, 31, 3)
    A("v_mov_b32 v6, 0\ns_mov_b64 exec, 1")
    A(f"buffer_store_dwordx2 v[30:31], v6, s[48:51], s{72+tau} offen sc0 sc1")
    A("s_mov_b64 exec, -1")


def flag_add(A, tau):
    A("v_mov_b32 v6, 0\nv_mov_b32 v5, s79")
    A("s_mov_b64 exec, 1")
    A(f"buffer_atomic_add v5, v6, s[44:47], s{76+tau} offen sc1")
    A("s_mov_b64 exec, -1")


def poll_issue(A, tau):
    A("v_mov_b32 v6, 0")
    A(f"buffer_load_dword v126, v6, s[44:47], s{76+tau} offen sc0 sc1")


def poll_check_and_payload(A, tau, name):
    A("v_readfirstlane_b32 s64, v126")
    A("s_nop 3")
    A.label(f"L_chk_{name}")
    A("s_lshr_b32 s64, s64, s78\ns_and_b32 s64, s64, 0xff\ns_cmp_eq_u32 s64, 4")
    A(f"s_cbranch_scc1 L_ok_{name}")
    A("s_sleep 8")
    poll_issue(A, tau)
    A("s_waitcnt vmcnt(0)\nv_readfirstlane_b32 s64, v126\ns_nop 3")
    A(f"s_branch L_chk_{name}")
    A.label(f"L_ok_{name}")
    A("v_and_b32 v6, 3, v1\nv_lshlrev_b32 v6, 3, v6")
    A(f"buffer_load_dwordx2 v[124:125], v6, s[48:51], s{74+tau} offen sc0 sc1")


def global_stats(A, tau):
    combine8(A, 124, 125, 2)
    A("v_rcp_f32 v6, v125\ns_nop 0")
    A("v_fma_f32 v5, -v125, v6, 1.0\nv_fma_f32 v125, v5, v6, v6")
    A("v_mov_b32 v6, 0\ns_mov_b64 exec, 1")
    A(f"ds_write_b64 v6, v[124:125] offset:{L_GST + tau*8}")
    A("s_mov_b64 exec, -1")


def scores_to_p(A, tau):
    A("v_mov_b32 v6, 0")
    A(f"ds_read_b128 v[26:29], v7 offset:{L_S + tau*8192}")
    A(f"ds_read_b64 v[30:31], v6 offset:{L_GST + tau*8}")
    A("s_waitcnt lgkmcnt(0)")
    for e in range(4):
        A(f"v_sub_f32 v{26+e}, v{26+e}, v30")
    for e in range(4):
        A(f"v_mul_f32 v{26+e}, s83, v{26+e}")
    for e in range(4):
        A(f"v_exp_f32 v{26+e}, v{26+e}")
    A("s_nop 0")
    for e in range(4):
        A(f"v_mul_f32 v{26+e}, v{26+e}, v31")
    for e in range(4):
        A(f"v_cvt_pk_bf16_f32 v{26+e}, v{26+e}, v6")
    A(f"ds_write_b128 v7, v[26:29] offset:{L_S + tau*8192}")
    A("s_waitcnt lgkmcnt(0)")


def switch_stream(A, srd_base, off_sreg):
    A(f"s_mov_b32 s52, s{srd_base}\ns_mov_b32 s53, s{srd_base+1}\ns_mov_b32 s54, s{srd_base+2}\ns_mov_b32 s55, s{srd_base+3}")
    A(f"s_mov_b32 s62, s{off_sreg}")


def grab_id(A, r):
    A(f"v_mov_b32 v{r}, 1\nv_mov_b32 v6, 0\ns_mov_b64 exec, 1")
    A(f"buffer_atomic_add v{r}, v6, s[48:51], s11 offen sc0 sc1")
    A("s_mov_b64 exec, -1")


def score_loads(A, idreg, rset):
    A(f"s_lshr_b32 s64, s{idreg}, 3\ns_lshl_b32 s64, s64, 13\ns_and_b32 s65, s{idreg}, 7\ns_lshl_b32 s65, s65, 6")
    A("s_add_u32 s64, s64, s65\ns_add_u32 s64, s64, s9")
    for k in range(4):
        A(f"buffer_load_dwordx4 v[{rset+4*k}:{rset+4*k+3}], v29, s[48:51], s64 offen offset:{16*k} sc0 sc1")


def hooks(A, tau, name):
    A(f"s_cmp_eq_u32 s59, 0\ns_cbranch_scc0 L_{name}_hx")
    A(f"s_cmp_eq_u32 s63, 0\ns_cbranch_scc0 L_{name}_a")
    wg_publish_payload(A, tau)
    if tau == 1:
        A("v_mov_b32 v6, 0\nbuffer_load_dword v127, v6, s[44:47], 0 offen offset:160 sc0 sc1")
    A(f"s_branch L_{name}_hx")
    A.label(f"L_{name}_a")
    A(f"s_cmp_eq_u32 s63, 1\ns_cbranch_scc0 L_{name}_b")
    flag_add(A, tau)
    if tau == 1:
        A.label("L_zf")
        A("v_readfirstlane_b32 s64, v127\ns_nop 3\ns_cmp_eq_u32 s64, 1\ns_cbranch_scc1 L_zf_ok\ns_sleep 8")
        A("v_mov_b32 v6, 0\nbuffer_load_dword v127, v6, s[44:47], 0 offen offset:160 sc0 sc1\ns_waitcnt vmcnt(0)\ns_branch L_zf")
        A.label("L_zf_ok")
        grab_id(A, 122)
    A(f"s_branch L_{name}_hx")
    A.label(f"L_{name}_b")
    A(f"s_cmp_eq_u32 s63, 2\ns_cbranch_scc0 L_{name}_c")
    poll_issue(A, tau)
    if tau == 1:
        grab_id(A, 123)
    A(f"s_branch L_{name}_hx")
    A.label(f"L_{name}_c")
    poll_check_and_payload(A, tau, name)
    A.label(f"L_{name}_hx")


def gen_attn(A):
    A.raw(".globl attn_kernel\n.p2align 8\n.type attn_kernel,@function\nattn_kernel:")
    A("s_cmp_ge_u32 s2, 256\ns_cbranch_scc1 L_endA")
    A("s_load_dwordx8 s[8:15], s[0:1], 0")
    A("s_load_dwordx2 s[16:17], s[0:1], 32")
    A("s_load_dwordx4 s[20:23], s[0:1], 88")
    A("v_and_b32 v1, 63, v0\nv_lshrrev_b32 v5, 6, v0\ns_nop 0\nv_readfirstlane_b32 s59, v5")
    A("s_and_b32 s64, s2, 1\ns_lshr_b32 s56, s2, 4\ns_lshl_b32 s56, s56, 1\ns_add_u32 s56, s56, s64")
    A("s_bfe_u32 s57, s2, 0x10003\ns_bfe_u32 s58, s2, 0x20001")
    A("v_mul_u32_u24 v2, 12, v1")
    A(f"s_mov_b32 s82, {SCALE:#x}\ns_mov_b32 s83, {LOG2E:#x}")
    A("s_mov_b32 s80, 0x11111111\ns_mov_b32 s81, 0x11111111")
    A("s_lshl_b32 s65, s57, 6\ns_add_u32 s65, s65, s56\ns_add_u32 s66, s65, 32")
    A("s_mul_i32 s67, s58, 786432\ns_mul_i32 s68, s59, 768\ns_add_u32 s67, s67, s68")
    A("s_mul_i32 s60, s65, 3145728\ns_add_u32 s60, s60, s67")
    A("s_add_u32 s61, s60, 100663296")
    A("s_lshl_b32 s68, s58, 3")
    A(f"s_lshl_b32 s74, s65, 7\ns_add_u32 s74, s74, {WS_STATS}\ns_add_u32 s75, s74, 4096")
    A("s_add_u32 s72, s74, s68\ns_add_u32 s73, s75, s68")
    A("s_lshr_b32 s76, s65, 2\ns_lshl_b32 s76, s76, 2\ns_add_u32 s77, s76, 32")
    A("s_and_b32 s78, s56, 3\ns_lshl_b32 s78, s78, 3\ns_lshl_b32 s79, 1, s78")
    A("s_waitcnt lgkmcnt(0)")
    stamp(A)
    srd(A, 24, 8, 9, 5120)
    srd(A, 28, 10, 11, KV_BYTES)
    srd(A, 32, 12, 13, KV_BYTES)
    srd(A, 36, 14, 15, W_BYTES)
    srd(A, 40, 16, 17, W_BYTES)
    srd(A, 44, 20, 21, 256)
    srd(A, 48, 22, 23, WS_SIZE)
    A("s_mul_i32 s8, s66, 3145728\ns_mul_i32 s64, s59, 768\ns_add_u32 s8, s8, s64")
    A("s_lshl_b32 s64, s56, 1\ns_add_u32 s64, s64, s57")
    A(f"s_lshl_b32 s9, s64, 15\ns_lshl_b32 s68, s59, 10\ns_add_u32 s9, s9, s68\ns_add_u32 s9, s9, {WS_SCG}")
    A("s_lshl_b32 s68, s58, 13\ns_add_u32 s10, s9, s68")
    A(f"s_lshl_b32 s11, s64, 7\ns_add_u32 s11, s11, {WS_CTR}")
    A("s_cmp_eq_u32 s2, 0\ns_cbranch_scc0 L_nozero\ns_cmp_eq_u32 s59, 7\ns_cbranch_scc0 L_nozero")
    A("v_mov_b32 v8, 0\nv_mov_b32 v9, 0\nv_mov_b32 v10, 0\nv_mov_b32 v11, 0\nv_lshlrev_b32 v5, 4, v1")
    for i in range(10):
        A(f"buffer_store_dwordx4 v[8:11], v5, s[48:51], 0 offen offset:{i*1024 if i < 4 else 0} sc0 sc1" if i < 4 else
          f"s_mov_b32 s64, {WS_HACC + i*1024}\nbuffer_store_dwordx4 v[8:11], v5, s[48:51], s64 offen sc0 sc1")
    for i in range(10):
        A(f"s_mov_b32 s64, {WS_YACC + i*1024}\nbuffer_store_dwordx4 v[8:11], v5, s[48:51], s64 offen sc0 sc1")
    for i in range(8):
        A(f"s_mov_b32 s64, {WS_CTR + i*1024}\nbuffer_store_dwordx4 v[8:11], v5, s[48:51], s64 offen sc0 sc1")
    A.label("L_nozero")
    A("v_lshrrev_b32 v5, 4, v1")
    A("v_bfe_u32 v6, v1, 2, 2")
    A("v_and_b32 v7, 1, v6\nv_lshlrev_b32 v7, 1, v7\nv_lshrrev_b32 v6, 1, v6\nv_add_u32 v6, v6, v7")
    A("v_lshlrev_b32 v6, 1, v6\nv_and_b32 v7, 1, v5\nv_add_u32 v6, v6, v7")
    A("v_lshrrev_b32 v5, 1, v5")
    A("v_lshlrev_b32 v5, 9, v5\nv_lshlrev_b32 v6, 2, v6\nv_add_u32 v3, v5, v6")
    A("s_lshl_b32 s64, s59, 10\nv_add_u32 v3, s64, v3")
    A("v_lshlrev_b32 v7, 4, v1\nv_add_u32 v7, s64, v7")
    A(f"v_mov_b32 v4, {NINF:#x}")
    A("v_lshrrev_b32 v5, 5, v1\nv_mul_u32_u24 v5, 12288, v5\nv_and_b32 v6, 31, v1\nv_mul_u32_u24 v6, 12, v6\nv_add_u32 v26, v5, v6")
    A("s_mul_i32 s69, s56, 384\ns_mul_i32 s68, s59, 24576\ns_add_u32 s69, s69, s68")
    A("s_cmp_lt_u32 s59, 2\ns_cbranch_scc0 L_ln_done")
    A("s_lshl_b32 s68, s57, 1\ns_add_u32 s64, s59, s68\ns_mul_i32 s64, s64, 1280")
    A("v_lshlrev_b32 v5, 4, v1\nv_lshlrev_b32 v6, 2, v1")
    A("buffer_load_dwordx4 v[28:31], v5, s[24:27], s64 offen")
    A("buffer_load_dword v25, v6, s[24:27], s64 offen offset:1024")
    A("s_waitcnt vmcnt(0)")
    for e in range(4):
        A(f"v_lshlrev_b32 v{8+2*e}, 16, v{28+e}\nv_and_b32 v{9+2*e}, 0xffff0000, v{28+e}")
    A("v_lshlrev_b32 v16, 16, v25\nv_and_b32 v17, 0xffff0000, v25")
    layernorm10(A, 8, 18)
    A("v_mov_b32 v6, 0")
    for e in range(10):
        A(f"v_cvt_pk_bf16_f32 v{8+e}, v{8+e}, v6")
    A("v_and_b32 v5, 1, v1\nv_mul_u32_u24 v5, 1280, v5\nv_lshrrev_b32 v6, 1, v1\nv_lshlrev_b32 v6, 2, v6\nv_add_u32 v5, v5, v6")
    A("s_mul_i32 s64, s59, 2560\nv_add_u32 v5, s64, v5")
    for e in range(8):
        A(f"ds_write_b32 v5, v{8+e} offset:{L_XNP + e*160}")
    A("v_and_b32 v5, 7, v1\nv_mul_u32_u24 v5, 320, v5\nv_lshrrev_b32 v6, 3, v1\nv_lshlrev_b32 v6, 2, v6\nv_add_u32 v5, v5, v6")
    A("v_add_u32 v5, s64, v5")
    for e in range(2):
        A(f"ds_write_b32 v5, v{16+e} offset:{L_XNP + 128 + e*160}")
    A.label("L_ln_done")
    for j in range(40):
        w = WQR(j)
        A(f"buffer_load_dwordx3 v[{w}:{w+2}], v26, s[36:39], s69 offen\ns_add_u32 s69, s69, {8*24576}")
    stamp(A)
    A("s_waitcnt lgkmcnt(0)\ns_barrier")
    switch_stream(A, 28, 60)
    for i in range(12):
        A(f"v_mov_b32 v{14+i}, 0")
    A("v_lshrrev_b32 v5, 5, v1\ns_lshl_b32 s64, s59, 1\nv_add_u32 v5, s64, v5\nv_mul_u32_u24 v27, 160, v5")
    nk = 0
    for c in range(10):
        A(f"ds_read_b128 v[8:11], v27 offset:{L_XNP + c*16}")
        A(f"ds_read_b128 v[28:31], v27 offset:{L_XNP + 2560 + c*16}")
        for jj in range(4):
            j = c * 4 + jj
            w = WQR(j)
            A(f"s_waitcnt vmcnt({39 - j + nk})" + (" lgkmcnt(0)" if jj == 0 else ""))
            if jj == 0:
                for q in range(4):
                    A(f"v_lshlrev_b32 v{8+q}, 16, v{8+q}\nv_lshlrev_b32 v{28+q}, 16, v{28+q}")
            for e in range(3):
                A(f"v_lshlrev_b32 v5, 16, v{w+e}\nv_and_b32 v6, 0xffff0000, v{w+e}")
                A(f"v_fmac_f32 v{14+2*e}, v5, v{8+jj}\nv_fmac_f32 v{15+2*e}, v6, v{8+jj}")
                A(f"v_fmac_f32 v{20+2*e}, v5, v{28+jj}\nv_fmac_f32 v{21+2*e}, v6, v{28+jj}")
            if j < 16:
                stream_issue(A, j); nk += 1
            elif j >= 24:
                stream_issue(A, 16 + j - 24); nk += 1
        if c == 0:
            A("s_cmp_eq_u32 s2, 0\ns_cbranch_scc0 L_nozf\ns_cmp_eq_u32 s59, 7\ns_cbranch_scc0 L_nozf")
            A("v_mov_b32 v5, 1\nv_mov_b32 v6, 0\ns_mov_b64 exec, 1")
            A("buffer_store_dword v5, v6, s[44:47], 0 offen offset:160 sc0 sc1")
            A("s_mov_b64 exec, -1")
            A.label("L_nozf")
    cross_wave_reduce_192(A, "q")
    A("v_and_b32 v5, 31, v1\nv_mul_u32_u24 v5, 12, v5")
    for tau in range(2):
        for e in range(3):
            A(f"ds_read_b32 v{8+3*tau+e}, v5 offset:{L_QB + tau*384 + e*4}")
    A("s_waitcnt lgkmcnt(0)")
    if DEBUG:
        A("s_cmp_eq_u32 s59, 0\ns_cbranch_scc0 L_dbgq")
        A(f"s_lshl_b32 s64, s2, 12\ns_add_u32 s64, s64, {WS_DBG}\nv_lshlrev_b32 v5, 5, v1")
        for i in range(6):
            A(f"buffer_store_dword v{8+i}, v5, s[48:51], s64 offen offset:{i*4}")
        A.label("L_dbgq")

    stamp(A)
    for tau in range(2):
        A("s_mov_b32 s63, 0")
        A.label(f"L_K{tau}")
        A("s_waitcnt lgkmcnt(0)\ns_barrier")
        A(f"s_cmp_eq_u32 s63, 3\ns_cbranch_scc0 L_K{tau}_h3")
        if tau == 0:
            switch_stream(A, 28, 61)
        else:
            switch_stream(A, 32, 60)
        A.label(f"L_K{tau}_h3")
        if tau == 1:
            hooks(A, 0, "K1")
        for g in range(4):
            for i in range(8):
                k_slot(A, 8 * g + i, 8 + 3 * tau)
            k_group_reduce(A, g, tau)
        A("v_add_u32 v3, 128, v3")
        A(f"s_add_u32 s63, s63, 1\ns_cmp_lt_u32 s63, 4\ns_cbranch_scc1 L_K{tau}")
        A("v_subrev_u32 v3, 512, v3")
        local_stats(A, tau)
        stamp(A)
    A("s_cmp_eq_u32 s59, 0\ns_cbranch_scc0 L_gs0")
    global_stats(A, 0)
    A.label("L_gs0")
    for i in range(12):
        A(f"v_mov_b32 v{14+i}, 0")
    A(f"ds_read_b128 v[26:29], v7 offset:{L_S + 8192}\nv_lshlrev_b32 v5, 4, v1\ns_waitcnt lgkmcnt(0)")
    A("buffer_store_dwordx4 v[26:29], v5, s[48:51], s10 offen sc0 sc1")
    A("v_lshrrev_b32 v5, 5, v1\nv_lshlrev_b32 v5, 9, v5\ns_lshl_b32 s64, s59, 10\nv_add_u32 v3, s64, v5")
    A("s_mov_b32 s63, 0")
    A.label("L_V0")
    A("s_waitcnt lgkmcnt(0)\ns_barrier")
    A("s_cmp_eq_u32 s63, 0\ns_cbranch_scc0 L_V0_h0")
    scores_to_p(A, 0)
    A.label("L_V0_h0")
    A("s_cmp_eq_u32 s63, 3\ns_cbranch_scc0 L_V0_h3")
    switch_stream(A, 32, 61)
    A("v_lshrrev_b32 v29, 5, v1\nv_lshlrev_b32 v29, 9, v29")
    A("s_lshl_b32 s12, s58, 3\ns_add_u32 s13, s12, 1")
    score_loads(A, 12, 64)
    score_loads(A, 13, 80)
    A.label("L_V0_h3")
    hooks(A, 1, "V0")
    for c in range(8):
        A(f"ds_read_b128 v[{32+4*c}:{35+4*c}], v3 offset:{L_S + c*16}")
    A("s_waitcnt lgkmcnt(0)")
    for j in range(D):
        v_slot(A, j, 14)
    A("v_add_u32 v3, 128, v3")
    A("s_add_u32 s63, s63, 1\ns_cmp_lt_u32 s63, 4\ns_cbranch_scc1 L_V0")
    A("s_cmp_eq_u32 s59, 0\ns_cbranch_scc0 L_gs1")
    global_stats(A, 1)
    A.label("L_gs1")
    stamp(A)
    A("s_mov_b32 s15, 0")
    A.label("L_V1")
    for par in range(2):
        A(f"s_cmp_eq_u32 s59, 0\ns_cbranch_scc0 L_V1_w{par}")
        A(f"s_waitcnt vmcnt(41)\nv_readfirstlane_b32 s64, v{122+par}\ns_nop 3")
        A("s_mul_i32 s65, s64, 43\ns_lshr_b32 s65, s65, 8\ns_mul_i32 s68, s65, 6\ns_sub_u32 s68, s64, s68\ns_lshl_b32 s65, s65, 3\ns_add_u32 s65, s65, s68\ns_add_u32 s65, s65, 2")
        A("s_cmp_lt_u32 s64, 24\ns_cselect_b32 s65, s65, 32")
        A(f"v_mov_b32 v5, s65\nv_mov_b32 v6, 0\ns_mov_b64 exec, 1\nds_write_b32 v6, v5 offset:{L_IDS + 4*par}\ns_mov_b64 exec, -1")
        grab_id(A, 122 + par)
        A.label(f"L_V1_w{par}")
        A("s_waitcnt lgkmcnt(0)\ns_barrier")
        A("s_cmp_ge_u32 s12, 32\ns_cbranch_scc1 L_V1_done")
        A(f"v_mov_b32 v6, 0\nds_read_b32 v5, v6 offset:{L_IDS + 4*par}")
        A("s_cmp_eq_u32 s15, 0\ns_cbranch_scc0 L_V1_ng%d" % par)
        A(f"ds_read_b64 v[30:31], v6 offset:{L_GST + 8}")
        A.label("L_V1_ng%d" % par)
        A("s_waitcnt vmcnt(36) lgkmcnt(0)\nv_readfirstlane_b32 s14, v5")
        R = 64 + 16 * par
        for e in range(16):
            A(f"v_sub_f32 v{32+e}, v{R+e}, v30")
        for e in range(16):
            A(f"v_mul_f32 v{32+e}, s83, v{32+e}")
        for e in range(16):
            A(f"v_exp_f32 v{32+e}, v{32+e}")
        A("v_mov_b32 v6, 0")
        for e in range(16):
            A(f"v_mul_f32 v{32+e}, v{32+e}, v31")
        for e in range(16):
            A(f"v_cvt_pk_bf16_f32 v{32+e}, v{32+e}, v6")
        score_loads(A, 14, R)
        A("s_mul_i32 s62, s14, 98304\ns_add_u32 s62, s62, s8")
        A(f"s_cmp_lt_u32 s14, 32\ns_cselect_b32 s54, {KV_BYTES}, 0")
        for jj in range(16):
            v_slot(A, 16 * par + jj, 20, p=32 + jj)
        A("s_mov_b32 s12, s13\ns_mov_b32 s13, s14\ns_add_u32 s15, s15, 1")
    A("s_branch L_V1")
    A.label("L_V1_done")
    A("s_waitcnt vmcnt(0)")
    stamp(A)
    A("s_mul_i32 s64, s56, 192\ns_mul_i32 s68, s59, 24\ns_add_u32 s64, s64, s68\ns_mul_i32 s64, s64, 1280")
    A("v_lshlrev_b32 v5, 4, v1\nv_lshlrev_b32 v6, 2, v1")
    for ii in range(24):
        A(f"buffer_load_dwordx4 v[{32+4*ii}:{35+4*ii}], v5, s[40:43], s64 offen")
        A(f"buffer_load_dword v{128+ii}, v6, s[40:43], s64 offen offset:1024")
        A("s_add_u32 s64, s64, 1280")
    cross_wave_reduce_192(A, "o")
    if DEBUG:
        A(f"v_lshlrev_b32 v5, 2, v0\nv_cmp_gt_u32 vcc, 384, v0\ns_and_saveexec_b64 s[64:65], vcc")
        A(f"ds_read_b32 v6, v5 offset:{L_OV}\ns_waitcnt lgkmcnt(0)")
        A(f"s_lshl_b32 s68, s2, 12\ns_add_u32 s68, s68, {WS_DBG + 2048}")
        A("buffer_store_dword v6, v5, s[48:51], s68 offen")
        A("s_mov_b64 exec, -1")
    stamp(A)
    A("s_mul_i32 s64, s59, 192\nv_mov_b32 v7, s64")
    for c in range(12):
        A(f"ds_read_b128 v[{176+4*c}:{179+4*c}], v7 offset:{L_OV + c*16}")
    for i in range(20):
        A(f"v_mov_b32 v{224+i}, 0")
    A("s_waitcnt vmcnt(0) lgkmcnt(0)")
    for ii in range(24):
        o0 = 176 + 2 * ii
        for e in range(5):
            w = (32 + 4 * ii + e) if e < 4 else (128 + ii)
            A(f"v_lshlrev_b32 v5, 16, v{w}\nv_and_b32 v6, 0xffff0000, v{w}")
            A(f"v_fmac_f32 v{224+2*e}, v5, v{o0}\nv_fmac_f32 v{225+2*e}, v6, v{o0}")
            A(f"v_fmac_f32 v{234+2*e}, v5, v{o0+1}\nv_fmac_f32 v{235+2*e}, v6, v{o0+1}")
    A("s_mul_i32 s64, s59, 5120\nv_lshlrev_b32 v5, 5, v1\nv_add_u32 v5, s64, v5\nv_lshlrev_b32 v6, 3, v1\nv_add_u32 v6, s64, v6")
    for tau in range(2):
        A(f"ds_write_b128 v5, v[{224+10*tau}:{227+10*tau}] offset:{L_OUTP + tau*2560}")
        A(f"ds_write_b128 v5, v[{228+10*tau}:{231+10*tau}] offset:{L_OUTP + tau*2560 + 16}")
        A(f"ds_write_b64 v6, v[{232+10*tau}:{233+10*tau}] offset:{L_OUTP + tau*2560 + 2048}")
    A("s_waitcnt lgkmcnt(0)\ns_barrier")
    A(f"s_mul_i32 s64, s57, 5120\ns_add_u32 s64, s64, {WS_HACC}\nv_lshlrev_b32 v5, 2, v0")
    for k in range(3):
        for w in range(8):
            A(f"ds_read_b32 v{8+8*k+w}, v5 offset:{L_OUTP + k*2048 + w*5120}")
    A("s_waitcnt lgkmcnt(0)")
    for k in range(3):
        r = 8 + 8 * k
        for w in range(4):
            A(f"v_add_f32 v{r+w}, v{r+w}, v{r+4+w}")
        A(f"v_add_f32 v{r}, v{r}, v{r+2}\nv_add_f32 v{r+1}, v{r+1}, v{r+3}\nv_add_f32 v{r}, v{r}, v{r+1}")
    A("buffer_atomic_add_f32 v8, v5, s[48:51], s64 offen")
    A("buffer_atomic_add_f32 v16, v5, s[48:51], s64 offen offset:2048")
    A("v_cmp_gt_u32 vcc, 256, v0\ns_and_saveexec_b64 s[66:67], vcc\ns_cbranch_execz L_endA2")
    A("s_add_u32 s64, s64, 4096\ns_nop 3")
    A("buffer_atomic_add_f32 v24, v5, s[48:51], s64 offen")
    A.label("L_endA2")
    A("s_mov_b64 exec, -1")
    stamp(A)
    if FUSED:
        import gen_mlp
        gen_mlp.gen_mlp_fused(A)
    stamp_dump(A, WS_DBG + 0x200000)
    A.label("L_endA")
    A("s_endpgm")


def layernorm10(A, x, t):
    s, u, m, vv, r = t, t + 1, t + 2, t + 3, t + 4
    A(f"v_add_f32 v{s}, v{x}, v{x+1}")
    for e in range(2, 10):
        A(f"v_add_f32 v{s}, v{s}, v{x+e}")
    wave_reduce(A, "add", s, u)
    A(f"v_mul_f32 v{m}, {INV640:#x}, v{s}")
    A(f"v_sub_f32 v{u}, v{x}, v{m}\nv_mul_f32 v{s}, v{u}, v{u}")
    for e in range(1, 10):
        A(f"v_sub_f32 v{u}, v{x+e}, v{m}\nv_fmac_f32 v{s}, v{u}, v{u}")
    wave_reduce(A, "add", s, u)
    A(f"v_mul_f32 v{vv}, {INV640:#x}, v{s}")
    rne(A, m)
    rne(A, vv)
    A(f"v_add_f32 v{vv}, {EPS:#x}, v{vv}")
    rne(A, vv)
    A(f"v_sqrt_f32 v{vv}, v{vv}\ns_nop 0")
    rne(A, vv)
    A(f"v_rcp_f32 v{r}, v{vv}\ns_nop 0")
    for e in range(10):
        A(f"v_sub_f32 v{x+e}, v{x+e}, v{m}")
        rne(A, x + e)
        A(f"v_mul_f32 v{s}, v{x+e}, v{r}")
        A(f"v_fma_f32 v{u}, -v{s}, v{vv}, v{x+e}")
        A(f"v_fma_f32 v{x+e}, v{u}, v{r}, v{s}")
        rne(A, x + e)


def cross_wave_reduce_192(A, kind):
    A("v_lshrrev_b32 v5, 5, v1\ns_lshl_b32 s64, s59, 1\nv_add_u32 v5, s64, v5\nv_mul_u32_u24 v5, 768, v5")
    A("v_and_b32 v6, 31, v1\nv_mul_u32_u24 v6, 24, v6\nv_add_u32 v5, v5, v6")
    for tau in range(2):
        for e in range(3):
            A(f"ds_write_b64 v5, v[{14+6*tau+2*e}:{15+6*tau+2*e}] offset:{L_QR + tau*12288 + e*8}")
    A("s_waitcnt lgkmcnt(0)\ns_barrier")
    A("v_cmp_gt_u32 vcc, 384, v0\ns_and_saveexec_b64 s[64:65], vcc")
    A(f"s_cbranch_execz L_cw_{kind}")
    A("v_cmp_le_u32 vcc, 192, v0\nv_mov_b32 v6, 0\nv_mov_b32 v5, 11520\ns_nop 0\nv_cndmask_b32 v6, v6, v5, vcc")
    A("v_lshlrev_b32 v5, 2, v0\nv_add_u32 v5, v5, v6")
    T = 112 if kind == "q" else 240
    for s in range(16):
        A(f"ds_read_b32 v{T+s}, v5 offset:{L_QR + s*768}")
    A("s_waitcnt lgkmcnt(0)")
    for s in range(8):
        A(f"v_add_f32 v{T+s}, v{T+s}, v{T+8+s}")
    for s in range(4):
        A(f"v_add_f32 v{T+s}, v{T+s}, v{T+4+s}")
    A(f"v_add_f32 v{T}, v{T}, v{T+2}\nv_add_f32 v{T+1}, v{T+1}, v{T+3}\nv_add_f32 v{T}, v{T}, v{T+1}")
    if kind == "q":
        A(f"v_cvt_pk_bf16_f32 v{T}, v{T}, v{T}\nv_lshlrev_b32 v5, 1, v0")
        A(f"ds_write_b16 v5, v{T} offset:{L_QB}")
    else:
        A(f"v_lshlrev_b32 v5, 3, v0\nv_mov_b32 v6, 0\nv_mov_b32 v{T+1}, 1532\nv_cndmask_b32 v6, v6, v{T+1}, vcc\nv_sub_u32 v5, v5, v6")
        A(f"ds_write_b32 v5, v{T} offset:{L_OV}")
    A.label(f"L_cw_{kind}")
    A("s_mov_b64 exec, -1")
    A("s_waitcnt lgkmcnt(0)\ns_barrier")


def kd(name, vgpr, sgpr=100):
    return f""".amdhsa_kernel {name}
  .amdhsa_next_free_vgpr {vgpr}
  .amdhsa_next_free_sgpr {sgpr}
  .amdhsa_accum_offset {vgpr}
  .amdhsa_group_segment_fixed_size 0
  .amdhsa_kernarg_size 104
  .amdhsa_user_sgpr_count 2
  .amdhsa_user_sgpr_kernarg_segment_ptr 1
  .amdhsa_system_sgpr_workgroup_id_x 1
.end_amdhsa_kernel
"""


HEADER = """; Kernarg layout for this problem (104 bytes, ptrs only, base s[0:1]):
;   offset  88: d_debug   256 bytes
"""


def main():
    global DEBUG, TIMING
    out = sys.argv[1] if len(sys.argv) > 1 else f"cdna_kernels/{NAME}.s"
    DEBUG = len(sys.argv) > 2 and sys.argv[2] == "debug"
    TIMING = len(sys.argv) > 2 and sys.argv[2] == "timing"
    only_a = len(sys.argv) > 3 and sys.argv[3] == "A"
    A = Asm()
    A.raw(HEADER.rstrip())
    import gen_mlp
    only_a = only_a or FUSED
    A.raw(f"; @launch kernel=attn_kernel grid=(256,1,1) block=(512,1,1) lds={max(L_END_A, gen_mlp.F_END) if FUSED else L_END_A}")
    if not only_a:
        A.raw(gen_mlp.launch_line())
    A.raw('.amdgcn_target "amdgcn-amd-amdhsa--gfx950"\n.text')
    gen_attn(A)
    if not only_a:
        gen_mlp.gen_mlp(A, DEBUG)
    A.raw('.section .rodata,"a"\n.p2align 6')
    A.raw(kd("attn_kernel", 256))
    if not only_a:
        A.raw(".p2align 6")
        A.raw(gen_mlp.kd())
    open(out, "w").write(A.text())


if __name__ == "__main__":
    import gen as _g
    _g.main()
```

```python
from gen import stamp, stamp_dump, srd, rne, wave_reduce, layernorm10, WS_HACC, WS_YACC, WS_SIZE, WS_DBG, LOG2E
import gen

NWG_B = 48
L_XN2 = 0
L_H = 10240
L_GU = 20480
L_ACT = 21504
L_SIG = 22016
L_FLAG = 22032
L_GUP = 22528
L_YR = 30720
L_END_B = 30720 + 81920

WG_BYTES = 640 * 1536 * 2


def launch_line():
    return f"; @launch kernel=mlp_kernel grid=({NWG_B},1,1) block=(1024,1,1) lds={L_END_B}"


def kd():
    return gen.kd("mlp_kernel", 128)


def sigmoid_mul(A, x, out, t):
    A(f"v_mul_f32 v{t}, s83, v{x}\nv_sub_f32 v{t}, 0, v{t}\nv_exp_f32 v{t}, v{t}\ns_nop 0\nv_add_f32 v{t}, 1.0, v{t}\nv_rcp_f32 v{out}, v{t}\ns_nop 0")
    A(f"v_fma_f32 v{t}, -v{t}, v{out}, 1.0\nv_fma_f32 v{out}, v{t}, v{out}, v{out}")


def reduce32(A, R):
    A("s_nop 1")
    for a in range(16):
        A(f"v_permlane32_swap_b32 v{R[a]}, v{R[a+16]}")
    A("s_nop 0")
    for a in range(16):
        A(f"v_add_f32 v{R[a]}, v{R[a]}, v{R[a+16]}")
    A("s_nop 1")
    for a in range(8):
        A(f"v_permlane16_swap_b32 v{R[a]}, v{R[a+8]}")
    A("s_nop 0")
    for a in range(8):
        A(f"v_add_f32 v{R[a]}, v{R[a]}, v{R[a+8]}")
    A("s_nop 1")
    for a in range(4):
        A(f"v_add_f32_dpp v{R[a]}, v{R[a]}, v{R[a]} row_ror:8 row_mask:0xf bank_mask:0x3")
    for a in range(4):
        A(f"v_add_f32_dpp v{R[a]}, v{R[a+4]}, v{R[a+4]} row_ror:8 row_mask:0xf bank_mask:0xc")
    A("s_nop 1")
    for a in range(2):
        A(f"v_add_f32_dpp v{R[a]}, v{R[a]}, v{R[a]} row_shl:4 row_mask:0xf bank_mask:0x5")
    for a in range(2):
        A(f"v_add_f32_dpp v{R[a]}, v{R[a+2]}, v{R[a+2]} row_shr:4 row_mask:0xf bank_mask:0xa")


def gen_mlp(A, debug=False):
    A.raw(".globl mlp_kernel\n.p2align 8\n.type mlp_kernel,@function\nmlp_kernel:")
    A(f"s_cmp_ge_u32 s2, {NWG_B}\ns_cbranch_scc1 L_endB")
    A("s_load_dwordx2 s[8:9], s[0:1], 0")
    A("s_load_dwordx8 s[12:19], s[0:1], 48")
    A("s_load_dwordx4 s[20:23], s[0:1], 80")
    A("s_load_dwordx2 s[10:11], s[0:1], 96")
    A("v_and_b32 v1, 63, v0\nv_lshrrev_b32 v5, 6, v0\ns_nop 0\nv_readfirstlane_b32 s59, v5")
    A(f"s_mov_b32 s83, {LOG2E:#x}")
    A("s_waitcnt lgkmcnt(0)")
    stamp(A)
    srd(A, 24, 8, 9, 5120)
    srd(A, 28, 12, 13, 1280)
    srd(A, 32, 14, 15, WG_BYTES)
    srd(A, 36, 16, 17, WG_BYTES)
    srd(A, 40, 18, 19, WG_BYTES)
    srd(A, 44, 22, 23, 256)
    srd(A, 48, 10, 11, WS_SIZE)
    srd(A, 72, 20, 21, 5120)
    A("s_cmp_lt_u32 s59, 4\ns_cbranch_scc0 L_b_noln0")
    A(f"s_mul_i32 s64, s59, 2560\ns_add_u32 s64, s64, {WS_HACC}\ns_mul_i32 s65, s59, 1280")
    A("v_lshlrev_b32 v5, 5, v1\nv_lshlrev_b32 v6, 3, v1\nv_lshlrev_b32 v7, 4, v1\nv_lshlrev_b32 v8, 2, v1")
    A("buffer_load_dwordx4 v[100:103], v5, s[48:51], s64 offen")
    A("buffer_load_dwordx4 v[104:107], v5, s[48:51], s64 offen offset:16")
    A("buffer_load_dwordx2 v[108:109], v6, s[48:51], s64 offen offset:2048")
    A("buffer_load_dwordx4 v[110:113], v7, s[24:27], s65 offen")
    A("buffer_load_dword v114, v8, s[24:27], s65 offen offset:1024")
    A("buffer_load_dwordx4 v[116:119], v7, s[28:31], 0 offen")
    A("buffer_load_dword v120, v8, s[28:31], 0 offen offset:1024")
    A.label("L_b_noln0")
    A("s_and_b32 s60, s59, 1\ns_lshr_b32 s61, s59, 1")
    A("s_cmp_eq_u32 s60, 0\ns_cselect_b32 s52, s32, s36\ns_cselect_b32 s53, s33, s37\ns_mov_b32 s54, s34\ns_mov_b32 s55, s35")
    A("v_lshrrev_b32 v5, 2, v1\nv_mul_u32_u24 v5, 3072, v5\nv_and_b32 v6, 3, v1\nv_lshlrev_b32 v6, 4, v6\nv_add_u32 v9, v5, v6")
    A("s_mul_i32 s64, s61, 49152\ns_lshl_b32 s65, s2, 6\ns_add_u32 s64, s64, s65")
    for i in range(5):
        A(f"buffer_load_dwordx4 v[{32+4*i}:{35+4*i}], v9, s[52:55], s64 offen\ns_add_u32 s64, s64, {128*3072}")
    A("s_cmp_lt_u32 s59, 8\ns_cbranch_scc0 L_b_nodown0")
    A("s_lshl_b32 s64, s2, 5\ns_lshl_b32 s65, s59, 2\ns_add_u32 s64, s64, s65\ns_mul_i32 s64, s64, 1280")
    A("v_lshlrev_b32 v7, 4, v1\nv_lshlrev_b32 v8, 2, v1")
    for ii in range(4):
        A(f"buffer_load_dwordx4 v[{52+4*ii}:{55+4*ii}], v7, s[40:43], s64 offen")
        A(f"buffer_load_dword v{68+ii}, v8, s[40:43], s64 offen offset:1024")
        A("s_add_u32 s64, s64, 1280")
    A.label("L_b_nodown0")
    A("s_cmp_lt_u32 s59, 4\ns_cbranch_scc0 L_b_noln1")
    A("s_waitcnt vmcnt(13)")
    for e in range(10):
        rne(A, 100 + e)
    for e in range(4):
        A(f"v_lshlrev_b32 v{12+2*e}, 16, v{110+e}\nv_and_b32 v{13+2*e}, 0xffff0000, v{110+e}")
    A("v_lshlrev_b32 v20, 16, v114\nv_and_b32 v21, 0xffff0000, v114")
    for e in range(10):
        A(f"v_add_f32 v{12+e}, v{12+e}, v{100+e}")
        rne(A, 12 + e)
    A("s_mul_i32 s64, s59, 2560\nv_lshlrev_b32 v5, 5, v1\nv_add_u32 v5, s64, v5\nv_lshlrev_b32 v6, 3, v1\nv_add_u32 v6, s64, v6")
    A(f"ds_write_b128 v5, v[12:15] offset:{L_H}")
    A(f"ds_write_b128 v5, v[16:19] offset:{L_H+16}")
    A(f"ds_write_b64 v6, v[20:21] offset:{L_H+2048}")
    A("s_nop 1")
    layernorm10(A, 12, 22)
    A("s_lshl_b32 s64, s59, 2\nv_lshlrev_b32 v5, 7, v1\nv_add_u32 v5, s64, v5\nv_lshlrev_b32 v6, 5, v1\nv_add_u32 v6, s64, v6")
    for e in range(8):
        A(f"ds_write_b32 v5, v{12+e} offset:{L_XN2 + e*16}")
    for e in range(2):
        A(f"ds_write_b32 v6, v{20+e} offset:{L_XN2 + 8192 + e*16}")
    for e in range(4):
        A(f"v_lshlrev_b32 v{100+2*e}, 16, v{116+e}\nv_and_b32 v{101+2*e}, 0xffff0000, v{116+e}")
    A("v_lshlrev_b32 v108, 16, v120\nv_and_b32 v109, 0xffff0000, v120")
    A("v_mul_f32 v22, v12, v100")
    for e in range(1, 10):
        A(f"v_fmac_f32 v22, v{12+e}, v{100+e}")
    wave_reduce(A, "add", 22, 23)
    rne(A, 22)
    sigmoid_mul(A, 22, 24, 23)
    rne(A, 24)
    A(f"v_mov_b32 v5, s64\ns_mov_b64 exec, 1\nds_write_b32 v5, v24 offset:{L_SIG}\ns_mov_b64 exec, -1")
    A.label("L_b_noln1")
    A("s_waitcnt lgkmcnt(0)\ns_barrier")
    stamp(A)
    A("s_lshl_b32 s64, s61, 8\nv_lshrrev_b32 v5, 2, v1\nv_lshlrev_b32 v5, 4, v5\nv_add_u32 v5, s64, v5")
    for i in range(5):
        A(f"ds_read_b128 v[{72+4*i}:{75+4*i}], v5 offset:{L_XN2 + i*2048}")
    for a in range(32):
        A(f"v_mov_b32 v{96+a}, 0")
    A("s_waitcnt vmcnt(8) lgkmcnt(0)")
    A("s_cmp_lt_u32 s59, 8\ns_cbranch_scc1 L_b_w8\ns_waitcnt vmcnt(0)")
    A.label("L_b_w8")
    for i in range(5):
        for e in range(4):
            w = 32 + 4 * i + e
            A(f"v_lshlrev_b32 v5, 16, v{w}\nv_and_b32 v6, 0xffff0000, v{w}")
            for b in range(4):
                A(f"v_fmac_f32 v{96+8*b+2*e}, v5, v{72+4*i+b}\nv_fmac_f32 v{97+8*b+2*e}, v6, v{72+4*i+b}")
    R = [96 + a for a in range(32)]
    reduce32(A, R)
    A("v_lshrrev_b32 v5, 4, v1\nv_lshlrev_b32 v5, 7, v5\nv_and_b32 v6, 3, v1\nv_lshlrev_b32 v6, 5, v6\nv_add_u32 v5, v5, v6")
    A("v_bfe_u32 v6, v1, 2, 2\nv_lshlrev_b32 v6, 3, v6\nv_add_u32 v5, v5, v6\ns_lshl_b32 s64, s60, 9\nv_add_u32 v5, s64, v5")
    A("s_lshl_b32 s64, s61, 10\nv_add_u32 v5, s64, v5")
    A(f"ds_write_b64 v5, v[{R[0]}:{R[1]}] offset:{L_GUP}")
    A("s_waitcnt lgkmcnt(0)\ns_barrier")
    stamp(A)
    A("s_cmp_lt_u32 s59, 2\ns_cbranch_scc0 L_b_noact")
    A("v_lshlrev_b32 v5, 2, v0")
    for w in range(8):
        A(f"ds_read_b32 v{32+w}, v5 offset:{L_GUP + w*1024}\nds_read_b32 v{40+w}, v5 offset:{L_GUP + 512 + w*1024}")
    A("s_waitcnt lgkmcnt(0)")
    for base, dst in ((32, 12), (40, 13)):
        for w in range(4):
            A(f"v_add_f32 v{base+w}, v{base+w}, v{base+4+w}")
        A(f"v_add_f32 v{base}, v{base}, v{base+2}\nv_add_f32 v{base+1}, v{base+1}, v{base+3}\nv_add_f32 v{dst}, v{base}, v{base+1}")
    rne(A, 12)
    rne(A, 13)
    sigmoid_mul(A, 12, 14, 15)
    A("v_mul_f32 v14, v14, v12")
    rne(A, 14)
    A("v_mul_f32 v14, v14, v13")
    rne(A, 14)
    A("v_and_b32 v5, 31, v0\nv_lshlrev_b32 v5, 4, v5\nv_lshrrev_b32 v6, 5, v0\nv_lshlrev_b32 v6, 2, v6\nv_add_u32 v5, v5, v6")
    A(f"ds_write_b32 v5, v14 offset:{L_ACT}")
    A.label("L_b_noact")
    A("s_waitcnt lgkmcnt(0)\ns_barrier")
    stamp(A)
    A("s_cmp_lt_u32 s59, 8\ns_cbranch_scc0 L_b_nodown1")
    A("s_lshl_b32 s64, s59, 6\nv_mov_b32 v5, s64")
    for ii in range(4):
        A(f"ds_read_b128 v[{72+4*ii}:{75+4*ii}], v5 offset:{L_ACT + ii*16}")
    for a in range(40):
        A(f"v_mov_b32 v{88+a}, 0")
    A("s_waitcnt vmcnt(0) lgkmcnt(0)")
    for ii in range(4):
        for e in range(5):
            w = (52 + 4 * ii + e) if e < 4 else (68 + ii)
            A(f"v_lshlrev_b32 v5, 16, v{w}\nv_and_b32 v6, 0xffff0000, v{w}")
            for b in range(4):
                A(f"v_fmac_f32 v{88+10*b+2*e}, v5, v{72+4*ii+b}\nv_fmac_f32 v{89+10*b+2*e}, v6, v{72+4*ii+b}")
    A("s_mul_i32 s64, s59, 10240\nv_lshlrev_b32 v5, 5, v1\nv_add_u32 v5, s64, v5\nv_lshlrev_b32 v6, 3, v1\nv_add_u32 v6, s64, v6")
    for b in range(4):
        A(f"ds_write_b128 v5, v[{88+10*b}:{91+10*b}] offset:{L_YR + b*2560}")
        A(f"ds_write_b128 v5, v[{92+10*b}:{95+10*b}] offset:{L_YR + b*2560 + 16}")
        A(f"ds_write_b64 v6, v[{96+10*b}:{97+10*b}] offset:{L_YR + b*2560 + 2048}")
    A.label("L_b_nodown1")
    A("s_waitcnt lgkmcnt(0)\ns_barrier")
    stamp(A)
    A(f"s_mov_b32 s64, {WS_YACC}\nv_lshlrev_b32 v5, 2, v0")
    for k in range(3):
        A(f"v_add_u32 v6, {L_YR + k*4096}, v5")
        for w in range(8):
            A(f"ds_read_b32 v{32+8*k+w}, v6 offset:{w*10240 if w < 6 else 0}" if w < 6 else
              f"v_add_u32 v7, {w*10240}, v6\nds_read_b32 v{32+8*k+w}, v7")
    A("s_waitcnt lgkmcnt(0)")
    for k in range(3):
        r = 32 + 8 * k
        for w in range(4):
            A(f"v_add_f32 v{r+w}, v{r+w}, v{r+4+w}")
        A(f"v_add_f32 v{r}, v{r}, v{r+2}\nv_add_f32 v{r+1}, v{r+1}, v{r+3}\nv_add_f32 v{12+k}, v{r}, v{r+1}")
    A("buffer_atomic_add_f32 v12, v5, s[48:51], s64 offen")
    A(f"s_mov_b32 s64, {WS_YACC+4096}\ns_nop 0")
    A("buffer_atomic_add_f32 v13, v5, s[48:51], s64 offen")
    A("s_cmp_lt_u32 s59, 8\ns_cbranch_scc0 L_b_noat")
    A(f"s_mov_b32 s64, {WS_YACC+8192}\ns_nop 0")
    A("buffer_atomic_add_f32 v14, v5, s[48:51], s64 offen")
    A.label("L_b_noat")
    A("s_waitcnt vmcnt(0)\ns_barrier")
    stamp(A)
    A("s_cmp_eq_u32 s59, 0\ns_cbranch_scc0 L_b_noctr")
    A("v_mov_b32 v5, 1\nv_mov_b32 v6, 0\ns_mov_b64 exec, 1")
    A("buffer_atomic_add v5, v6, s[44:47], 0 offen sc0 sc1")
    A("s_waitcnt vmcnt(0)")
    A(f"ds_write_b32 v6, v5 offset:{L_FLAG}")
    A("s_mov_b64 exec, -1")
    A.label("L_b_noctr")
    A("s_waitcnt lgkmcnt(0)\ns_barrier")
    A(f"v_mov_b32 v6, 0\nds_read_b32 v5, v6 offset:{L_FLAG}\ns_waitcnt lgkmcnt(0)\nv_readfirstlane_b32 s64, v5\ns_nop 3")
    stamp(A)
    stamp_dump(A, WS_DBG + 0x300000)
    A(f"s_cmp_eq_u32 s64, {NWG_B-1}\ns_cbranch_scc0 L_endB")
    for k in range(3):
        if k == 2:
            A("s_cmp_lt_u32 s59, 8\ns_cbranch_scc0 L_endB")
        A(f"v_add_u32 v20, {1024*k}, v0")
        A(f"v_lshlrev_b32 v5, 2, v20\ns_mov_b32 s64, {WS_YACC}\ns_nop 0")
        A("buffer_load_dword v12, v5, s[48:51], s64 offen sc0 sc1")
        A(f"ds_read_b32 v13, v5 offset:{L_H}")
        A("v_mov_b32 v6, 0")
        for th in (640, 1280, 1920):
            A(f"v_cmp_le_u32 vcc, {th}, v20\ns_nop 1\nv_addc_co_u32 v6, vcc, 0, v6, vcc")
        A("v_mul_u32_u24 v7, 640, v6\nv_sub_u32 v7, v20, v7")
        A("v_lshlrev_b32 v7, 4, v7\nv_lshlrev_b32 v6, 2, v6\nv_add_u32 v7, v7, v6")
        A(f"ds_read_b32 v14, v7 offset:{L_XN2}\nds_read_b32 v15, v6 offset:{L_SIG}")
        A("s_waitcnt vmcnt(0) lgkmcnt(0)")
        rne(A, 12)
        A("v_mul_f32 v12, v12, v15")
        rne(A, 12)
        A("v_add_f32 v12, v12, v14")
        rne(A, 12)
        A("v_add_f32 v12, v12, v13")
        A("v_cvt_pk_bf16_f32 v12, v12, v12\nv_lshlrev_b32 v5, 1, v20")
        A("buffer_store_short v12, v5, s[72:75], 0 offen")
    A.label("L_endB")
    A("s_endpgm")


F_XN2 = 0
F_H = 10240
F_GUP = 20480
F_ACT = 24576
F_SIG = 25088
F_FLAG = 25104
F_YR = 25600
F_END = 25600 + 81920


def gen_mlp_fused(A):
    A("s_load_dwordx8 s[12:19], s[0:1], 48")
    A("s_load_dwordx2 s[20:21], s[0:1], 80")
    A("s_mov_b64 exec, -1")
    A(f"s_cmp_lt_u32 s2, {NWG_B}\ns_cbranch_scc1 L_f_worker")
    A("s_waitcnt vmcnt(0) lgkmcnt(0)\ns_barrier")
    A("s_cmp_eq_u32 s59, 0\ns_cbranch_scc0 L_f_end")
    A("v_mov_b32 v5, 1\nv_mov_b32 v6, 0\ns_mov_b64 exec, 1")
    A("buffer_atomic_add v5, v6, s[44:47], 0 offen offset:200 sc1")
    A("s_branch L_f_end")
    A.label("L_f_worker")
    A("s_waitcnt lgkmcnt(0)")
    srd(A, 28, 12, 13, 1280)
    srd(A, 32, 14, 15, WG_BYTES)
    srd(A, 36, 16, 17, WG_BYTES)
    srd(A, 40, 18, 19, WG_BYTES)
    srd(A, 72, 20, 21, 5120)
    A("s_and_b32 s60, s59, 1\ns_lshr_b32 s61, s59, 1")
    A("s_cmp_eq_u32 s60, 0\ns_cselect_b32 s52, s32, s36\ns_cselect_b32 s53, s33, s37\ns_mov_b32 s54, s34\ns_mov_b32 s55, s35")
    A("v_lshrrev_b32 v5, 2, v1\nv_mul_u32_u24 v5, 3072, v5\nv_and_b32 v6, 3, v1\nv_lshlrev_b32 v6, 4, v6\nv_add_u32 v9, v5, v6")
    A("s_mul_i32 s64, s61, 49152\ns_lshl_b32 s65, s2, 6\ns_add_u32 s64, s64, s65")
    for i in range(10):
        A(f"buffer_load_dwordx4 v[{32+4*i}:{35+4*i}], v9, s[52:55], s64 offen\ns_add_u32 s64, s64, {64*3072}")
    A("s_lshl_b32 s64, s2, 5\ns_lshl_b32 s65, s59, 2\ns_add_u32 s64, s64, s65\ns_mul_i32 s64, s64, 1280")
    A("v_lshlrev_b32 v7, 4, v1\nv_lshlrev_b32 v8, 2, v1")
    for ii in range(4):
        A(f"buffer_load_dwordx4 v[{72+4*ii}:{75+4*ii}], v7, s[40:43], s64 offen")
        A(f"buffer_load_dword v{88+ii}, v8, s[40:43], s64 offen offset:1024")
        A("s_add_u32 s64, s64, 1280")
    A("s_mul_i32 s65, s59, 1280")
    A("buffer_load_dwordx4 v[210:213], v7, s[24:27], s65 offen")
    A("buffer_load_dword v214, v8, s[24:27], s65 offen offset:1024")
    A("buffer_load_dwordx4 v[216:219], v7, s[28:31], 0 offen")
    A("buffer_load_dword v220, v8, s[28:31], 0 offen offset:1024")
    A("s_waitcnt vmcnt(22)\ns_barrier")
    A("s_cmp_eq_u32 s59, 0\ns_cbranch_scc0 L_f_w0done")
    A("v_mov_b32 v5, 1\nv_mov_b32 v6, 0\ns_mov_b64 exec, 1")
    A("buffer_atomic_add v5, v6, s[44:47], 0 offen offset:200 sc1")
    A("s_mov_b64 exec, -1")
    A.label("L_f_poll")
    A("buffer_load_dword v5, v6, s[44:47], 0 offen offset:200 sc0 sc1\ns_waitcnt vmcnt(0)\nv_readfirstlane_b32 s64, v5\ns_nop 3")
    A("s_cmp_eq_u32 s64, 256\ns_cbranch_scc1 L_f_w0done\ns_sleep 1\ns_branch L_f_poll")
    A.label("L_f_w0done")
    A("s_barrier")
    stamp(A)
    A("s_cmp_lt_u32 s59, 4\ns_cbranch_scc0 L_f_noln")
    A(f"s_mul_i32 s64, s59, 2560\ns_add_u32 s64, s64, {WS_HACC}")
    A("v_lshlrev_b32 v5, 5, v1\nv_lshlrev_b32 v6, 3, v1")
    A("buffer_load_dwordx4 v[200:203], v5, s[48:51], s64 offen sc0 sc1")
    A("buffer_load_dwordx4 v[204:207], v5, s[48:51], s64 offen offset:16 sc0 sc1")
    A("buffer_load_dwordx2 v[208:209], v6, s[48:51], s64 offen offset:2048 sc0 sc1")
    A("s_waitcnt vmcnt(0)")
    for e in range(10):
        rne(A, 200 + e)
    for e in range(4):
        A(f"v_lshlrev_b32 v{12+2*e}, 16, v{210+e}\nv_and_b32 v{13+2*e}, 0xffff0000, v{210+e}")
    A("v_lshlrev_b32 v20, 16, v214\nv_and_b32 v21, 0xffff0000, v214")
    for e in range(10):
        A(f"v_add_f32 v{12+e}, v{12+e}, v{200+e}")
        rne(A, 12 + e)
    A("s_mul_i32 s64, s59, 2560\nv_lshlrev_b32 v5, 5, v1\nv_add_u32 v5, s64, v5\nv_lshlrev_b32 v6, 3, v1\nv_add_u32 v6, s64, v6")
    A(f"ds_write_b128 v5, v[12:15] offset:{F_H}")
    A(f"ds_write_b128 v5, v[16:19] offset:{F_H+16}")
    A(f"ds_write_b64 v6, v[20:21] offset:{F_H+2048}")
    A("s_nop 1")
    layernorm10(A, 12, 22)
    A("s_lshl_b32 s64, s59, 2\nv_lshlrev_b32 v5, 7, v1\nv_add_u32 v5, s64, v5\nv_lshlrev_b32 v6, 5, v1\nv_add_u32 v6, s64, v6")
    for e in range(8):
        A(f"ds_write_b32 v5, v{12+e} offset:{F_XN2 + e*16}")
    for e in range(2):
        A(f"ds_write_b32 v6, v{20+e} offset:{F_XN2 + 8192 + e*16}")
    for e in range(4):
        A(f"v_lshlrev_b32 v{200+2*e}, 16, v{216+e}\nv_and_b32 v{201+2*e}, 0xffff0000, v{216+e}")
    A("v_lshlrev_b32 v208, 16, v220\nv_and_b32 v209, 0xffff0000, v220")
    A("v_mul_f32 v22, v12, v200")
    for e in range(1, 10):
        A(f"v_fmac_f32 v22, v{12+e}, v{200+e}")
    wave_reduce(A, "add", 22, 23)
    rne(A, 22)
    sigmoid_mul(A, 22, 24, 23)
    rne(A, 24)
    A(f"v_mov_b32 v5, s64\ns_mov_b64 exec, 1\nds_write_b32 v5, v24 offset:{F_SIG}\ns_mov_b64 exec, -1")
    A.label("L_f_noln")
    A("s_waitcnt lgkmcnt(0)\ns_barrier")
    stamp(A)
    A("s_lshl_b32 s64, s61, 8\nv_lshrrev_b32 v5, 2, v1\nv_lshlrev_b32 v5, 4, v5\nv_add_u32 v5, s64, v5")
    for i in range(10):
        A(f"ds_read_b128 v[{96+4*i}:{99+4*i}], v5 offset:{F_XN2 + i*1024}")
    for a in range(32):
        A(f"v_mov_b32 v{136+a}, 0")
    A("s_waitcnt vmcnt(0) lgkmcnt(0)")
    for i in range(10):
        for e in range(4):
            w = 32 + 4 * i + e
            A(f"v_lshlrev_b32 v5, 16, v{w}\nv_and_b32 v6, 0xffff0000, v{w}")
            for b in range(4):
                A(f"v_fmac_f32 v{136+8*b+2*e}, v5, v{96+4*i+b}\nv_fmac_f32 v{137+8*b+2*e}, v6, v{96+4*i+b}")
    reduce32(A, [136 + a for a in range(32)])
    A("v_lshrrev_b32 v5, 4, v1\nv_lshlrev_b32 v5, 7, v5\nv_and_b32 v6, 3, v1\nv_lshlrev_b32 v6, 5, v6\nv_add_u32 v5, v5, v6")
    A("v_bfe_u32 v6, v1, 2, 2\nv_lshlrev_b32 v6, 3, v6\nv_add_u32 v5, v5, v6\ns_lshl_b32 s64, s59, 9\nv_add_u32 v5, s64, v5")
    A(f"ds_write_b64 v5, v[136:137] offset:{F_GUP}")
    A("s_waitcnt lgkmcnt(0)\ns_barrier")
    A("s_cmp_lt_u32 s59, 2\ns_cbranch_scc0 L_f_noact")
    A("v_lshlrev_b32 v5, 2, v0")
    for w in range(4):
        A(f"ds_read_b32 v{32+w}, v5 offset:{F_GUP + w*1024}\nds_read_b32 v{40+w}, v5 offset:{F_GUP + 512 + w*1024}")
    A("s_waitcnt lgkmcnt(0)")
    for base, dst in ((32, 12), (40, 13)):
        A(f"v_add_f32 v{base}, v{base}, v{base+2}\nv_add_f32 v{base+1}, v{base+1}, v{base+3}\nv_add_f32 v{dst}, v{base}, v{base+1}")
    rne(A, 12)
    rne(A, 13)
    sigmoid_mul(A, 12, 14, 15)
    A("v_mul_f32 v14, v14, v12")
    rne(A, 14)
    A("v_mul_f32 v14, v14, v13")
    rne(A, 14)
    A("v_and_b32 v5, 31, v0\nv_lshlrev_b32 v5, 4, v5\nv_lshrrev_b32 v6, 5, v0\nv_lshlrev_b32 v6, 2, v6\nv_add_u32 v5, v5, v6")
    A(f"ds_write_b32 v5, v14 offset:{F_ACT}")
    A.label("L_f_noact")
    A("s_waitcnt lgkmcnt(0)\ns_barrier")
    A("s_lshl_b32 s64, s59, 6\nv_mov_b32 v5, s64")
    for ii in range(4):
        A(f"ds_read_b128 v[{96+4*ii}:{99+4*ii}], v5 offset:{F_ACT + ii*16}")
    for a in range(40):
        A(f"v_mov_b32 v{136+a}, 0")
    A("s_waitcnt lgkmcnt(0)")
    for ii in range(4):
        for e in range(5):
            w = (72 + 4 * ii + e) if e < 4 else (88 + ii)
            A(f"v_lshlrev_b32 v5, 16, v{w}\nv_and_b32 v6, 0xffff0000, v{w}")
            for b in range(4):
                A(f"v_fmac_f32 v{136+10*b+2*e}, v5, v{96+4*ii+b}\nv_fmac_f32 v{137+10*b+2*e}, v6, v{96+4*ii+b}")
    A("s_mul_i32 s64, s59, 10240\nv_lshlrev_b32 v5, 5, v1\nv_add_u32 v5, s64, v5\nv_lshlrev_b32 v6, 3, v1\nv_add_u32 v6, s64, v6")
    for b in range(4):
        A(f"ds_write_b128 v5, v[{136+10*b}:{139+10*b}] offset:{F_YR + b*2560}")
        A(f"ds_write_b128 v5, v[{140+10*b}:{143+10*b}] offset:{F_YR + b*2560 + 16}")
        A(f"ds_write_b64 v6, v[{144+10*b}:{145+10*b}] offset:{F_YR + b*2560 + 2048}")
    A("s_waitcnt lgkmcnt(0)\ns_barrier")
    A("v_lshlrev_b32 v5, 2, v0")
    for k in range(5):
        A(f"v_add_u32 v6, {F_YR + k*2048}, v5")
        for w in range(8):
            A(f"ds_read_b32 v{32+8*k+w}, v6 offset:{w*10240}" if w < 6 else
              f"v_add_u32 v7, {w*10240}, v6\nds_read_b32 v{32+8*k+w}, v7")
    A("s_waitcnt lgkmcnt(0)")
    for k in range(5):
        r = 32 + 8 * k
        for w in range(4):
            A(f"v_add_f32 v{r+w}, v{r+w}, v{r+4+w}")
        A(f"v_add_f32 v{r}, v{r}, v{r+2}\nv_add_f32 v{r+1}, v{r+1}, v{r+3}\nv_add_f32 v{r}, v{r}, v{r+1}")
        A(f"s_mov_b32 s64, {WS_YACC + k*2048}\ns_nop 0")
        A(f"buffer_atomic_add_f32 v{r}, v5, s[48:51], s64 offen")
    A("s_waitcnt vmcnt(0)\ns_barrier")
    stamp(A)
    A("s_cmp_eq_u32 s59, 0\ns_cbranch_scc0 L_f_noctr")
    A("v_mov_b32 v5, 1\nv_mov_b32 v6, 0\ns_mov_b64 exec, 1")
    A("buffer_atomic_add v5, v6, s[44:47], 0 offen offset:204 sc0 sc1")
    A("s_waitcnt vmcnt(0)")
    A(f"ds_write_b32 v6, v5 offset:{F_FLAG}")
    A("s_mov_b64 exec, -1")
    A.label("L_f_noctr")
    A("s_waitcnt lgkmcnt(0)\ns_barrier")
    A(f"v_mov_b32 v6, 0\nds_read_b32 v5, v6 offset:{F_FLAG}\ns_waitcnt lgkmcnt(0)\nv_readfirstlane_b32 s64, v5\ns_nop 3")
    A(f"s_cmp_eq_u32 s64, {NWG_B-1}\ns_cbranch_scc0 L_f_end")
    for k in range(5):
        A(f"v_add_u32 v{20+k}, {512*k}, v0\nv_lshlrev_b32 v5, 2, v{20+k}\ns_mov_b32 s64, {WS_YACC}\ns_nop 0")
        A(f"buffer_load_dword v{32+k}, v5, s[48:51], s64 offen sc0 sc1")
        A(f"ds_read_b32 v{40+k}, v5 offset:{F_H}")
        A("v_mov_b32 v6, 0")
        for th in (640, 1280, 1920):
            A(f"v_cmp_le_u32 vcc, {th}, v{20+k}\ns_nop 1\nv_addc_co_u32 v6, vcc, 0, v6, vcc")
        A(f"v_mul_u32_u24 v7, 640, v6\nv_sub_u32 v7, v{20+k}, v7")
        A("v_lshlrev_b32 v7, 4, v7\nv_lshlrev_b32 v6, 2, v6\nv_add_u32 v7, v7, v6")
        A(f"ds_read_b32 v{48+k}, v7 offset:{F_XN2}\nds_read_b32 v{56+k}, v6 offset:{F_SIG}")
    A("s_waitcnt vmcnt(0) lgkmcnt(0)")
    for k in range(5):
        r = 32 + k
        rne(A, r)
        A(f"v_mul_f32 v{r}, v{r}, v{56+k}")
        rne(A, r)
        A(f"v_add_f32 v{r}, v{r}, v{48+k}")
        rne(A, r)
        A(f"v_add_f32 v{r}, v{r}, v{40+k}")
        A(f"v_cvt_pk_bf16_f32 v{r}, v{r}, v{r}\nv_lshlrev_b32 v5, 1, v{20+k}")
        A(f"buffer_store_short v{r}, v5, s[72:75], 0 offen")
    A.label("L_f_end")
```

```python
from gen import stamp, stamp_dump, srd, rne, wave_reduce, layernorm10, WS_HACC, WS_YACC, WS_SIZE, WS_DBG, LOG2E
import gen

NWG_B = 48
L_XN2 = 0
L_H = 10240
L_GU = 20480
L_ACT = 21504
L_SIG = 22016
L_FLAG = 22032
L_GUP = 22528
L_YR = 30720
L_END_B = 30720 + 81920

WG_BYTES = 640 * 1536 * 2


def launch_line():
    return f"; @launch kernel=mlp_kernel grid=({NWG_B},1,1) block=(1024,1,1) lds={L_END_B}"


def kd():
    return gen.kd("mlp_kernel", 128)


def sigmoid_mul(A, x, out, t):
    A(f"v_mul_f32 v{t}, s83, v{x}\nv_sub_f32 v{t}, 0, v{t}\nv_exp_f32 v{t}, v{t}\ns_nop 0\nv_add_f32 v{t}, 1.0, v{t}\nv_rcp_f32 v{out}, v{t}\ns_nop 0")
    A(f"v_fma_f32 v{t}, -v{t}, v{out}, 1.0\nv_fma_f32 v{out}, v{t}, v{out}, v{out}")


def reduce32(A, R):
    A("s_nop 1")
    for a in range(16):
        A(f"v_permlane32_swap_b32 v{R[a]}, v{R[a+16]}")
    A("s_nop 0")
    for a in range(16):
        A(f"v_add_f32 v{R[a]}, v{R[a]}, v{R[a+16]}")
    A("s_nop 1")
    for a in range(8):
        A(f"v_permlane16_swap_b32 v{R[a]}, v{R[a+8]}")
    A("s_nop 0")
    for a in range(8):
        A(f"v_add_f32 v{R[a]}, v{R[a]}, v{R[a+8]}")
    A("s_nop 1")
    for a in range(4):
        A(f"v_add_f32_dpp v{R[a]}, v{R[a]}, v{R[a]} row_ror:8 row_mask:0xf bank_mask:0x3")
    for a in range(4):
        A(f"v_add_f32_dpp v{R[a]}, v{R[a+4]}, v{R[a+4]} row_ror:8 row_mask:0xf bank_mask:0xc")
    A("s_nop 1")
    for a in range(2):
        A(f"v_add_f32_dpp v{R[a]}, v{R[a]}, v{R[a]} row_shl:4 row_mask:0xf bank_mask:0x5")
    for a in range(2):
        A(f"v_add_f32_dpp v{R[a]}, v{R[a+2]}, v{R[a+2]} row_shr:4 row_mask:0xf bank_mask:0xa")


def gen_mlp(A, debug=False):
    A.raw(".globl mlp_kernel\n.p2align 8\n.type mlp_kernel,@function\nmlp_kernel:")
    A(f"s_cmp_ge_u32 s2, {NWG_B}\ns_cbranch_scc1 L_endB")
    A("s_load_dwordx2 s[8:9], s[0:1], 0")
    A("s_load_dwordx8 s[12:19], s[0:1], 48")
    A("s_load_dwordx4 s[20:23], s[0:1], 80")
    A("s_load_dwordx2 s[10:11], s[0:1], 96")
    A("v_and_b32 v1, 63, v0\nv_lshrrev_b32 v5, 6, v0\ns_nop 0\nv_readfirstlane_b32 s59, v5")
    A(f"s_mov_b32 s83, {LOG2E:#x}")
    A("s_waitcnt lgkmcnt(0)")
    stamp(A)
    srd(A, 24, 8, 9, 5120)
    srd(A, 28, 12, 13, 1280)
    srd(A, 32, 14, 15, WG_BYTES)
    srd(A, 36, 16, 17, WG_BYTES)
    srd(A, 40, 18, 19, WG_BYTES)
    srd(A, 44, 22, 23, 256)
    srd(A, 48, 10, 11, WS_SIZE)
    srd(A, 72, 20, 21, 5120)
    A("s_cmp_lt_u32 s59, 4\ns_cbranch_scc0 L_b_noln0")
    A(f"s_mul_i32 s64, s59, 2560\ns_add_u32 s64, s64, {WS_HACC}\ns_mul_i32 s65, s59, 1280")
    A("v_lshlrev_b32 v5, 5, v1\nv_lshlrev_b32 v6, 3, v1\nv_lshlrev_b32 v7, 4, v1\nv_lshlrev_b32 v8, 2, v1")
    A("buffer_load_dwordx4 v[100:103], v5, s[48:51], s64 offen")
    A("buffer_load_dwordx4 v[104:107], v5, s[48:51], s64 offen offset:16")
    A("buffer_load_dwordx2 v[108:109], v6, s[48:51], s64 offen offset:2048")
    A("buffer_load_dwordx4 v[110:113], v7, s[24:27], s65 offen")
    A("buffer_load_dword v114, v8, s[24:27], s65 offen offset:1024")
    A("buffer_load_dwordx4 v[116:119], v7, s[28:31], 0 offen")
    A("buffer_load_dword v120, v8, s[28:31], 0 offen offset:1024")
    A.label("L_b_noln0")
    A("s_and_b32 s60, s59, 1\ns_lshr_b32 s61, s59, 1")
    A("s_cmp_eq_u32 s60, 0\ns_cselect_b32 s52, s32, s36\ns_cselect_b32 s53, s33, s37\ns_mov_b32 s54, s34\ns_mov_b32 s55, s35")
    A("v_lshrrev_b32 v5, 2, v1\nv_mul_u32_u24 v5, 3072, v5\nv_and_b32 v6, 3, v1\nv_lshlrev_b32 v6, 4, v6\nv_add_u32 v9, v5, v6")
    A("s_mul_i32 s64, s61, 49152\ns_lshl_b32 s65, s2, 6\ns_add_u32 s64, s64, s65")
    for i in range(5):
        A(f"buffer_load_dwordx4 v[{32+4*i}:{35+4*i}], v9, s[52:55], s64 offen\ns_add_u32 s64, s64, {128*3072}")
    A("s_cmp_lt_u32 s59, 8\ns_cbranch_scc0 L_b_nodown0")
    A("s_lshl_b32 s64, s2, 5\ns_lshl_b32 s65, s59, 2\ns_add_u32 s64, s64, s65\ns_mul_i32 s64, s64, 1280")
    A("v_lshlrev_b32 v7, 4, v1\nv_lshlrev_b32 v8, 2, v1")
    for ii in range(4):
        A(f"buffer_load_dwordx4 v[{52+4*ii}:{55+4*ii}], v7, s[40:43], s64 offen")
        A(f"buffer_load_dword v{68+ii}, v8, s[40:43], s64 offen offset:1024")
        A("s_add_u32 s64, s64, 1280")
    A.label("L_b_nodown0")
    A("s_cmp_lt_u32 s59, 4\ns_cbranch_scc0 L_b_noln1")
    A("s_waitcnt vmcnt(13)")
    for e in range(10):
        rne(A, 100 + e)
    for e in range(4):
        A(f"v_lshlrev_b32 v{12+2*e}, 16, v{110+e}\nv_and_b32 v{13+2*e}, 0xffff0000, v{110+e}")
    A("v_lshlrev_b32 v20, 16, v114\nv_and_b32 v21, 0xffff0000, v114")
    for e in range(10):
        A(f"v_add_f32 v{12+e}, v{12+e}, v{100+e}")
        rne(A, 12 + e)
    A("s_mul_i32 s64, s59, 2560\nv_lshlrev_b32 v5, 5, v1\nv_add_u32 v5, s64, v5\nv_lshlrev_b32 v6, 3, v1\nv_add_u32 v6, s64, v6")
    A(f"ds_write_b128 v5, v[12:15] offset:{L_H}")
    A(f"ds_write_b128 v5, v[16:19] offset:{L_H+16}")
    A(f"ds_write_b64 v6, v[20:21] offset:{L_H+2048}")
    A("s_nop 1")
    layernorm10(A, 12, 22)
    A("s_lshl_b32 s64, s59, 2\nv_lshlrev_b32 v5, 7, v1\nv_add_u32 v5, s64, v5\nv_lshlrev_b32 v6, 5, v1\nv_add_u32 v6, s64, v6")
    for e in range(8):
        A(f"ds_write_b32 v5, v{12+e} offset:{L_XN2 + e*16}")
    for e in range(2):
        A(f"ds_write_b32 v6, v{20+e} offset:{L_XN2 + 8192 + e*16}")
    for e in range(4):
        A(f"v_lshlrev_b32 v{100+2*e}, 16, v{116+e}\nv_and_b32 v{101+2*e}, 0xffff0000, v{116+e}")
    A("v_lshlrev_b32 v108, 16, v120\nv_and_b32 v109, 0xffff0000, v120")
    A("v_mul_f32 v22, v12, v100")
    for e in range(1, 10):
        A(f"v_fmac_f32 v22, v{12+e}, v{100+e}")
    wave_reduce(A, "add", 22, 23)
    rne(A, 22)
    sigmoid_mul(A, 22, 24, 23)
    rne(A, 24)
    A(f"v_mov_b32 v5, s64\ns_mov_b64 exec, 1\nds_write_b32 v5, v24 offset:{L_SIG}\ns_mov_b64 exec, -1")
    A.label("L_b_noln1")
    A("s_waitcnt lgkmcnt(0)\ns_barrier")
    stamp(A)
    A("s_lshl_b32 s64, s61, 8\nv_lshrrev_b32 v5, 2, v1\nv_lshlrev_b32 v5, 4, v5\nv_add_u32 v5, s64, v5")
    for i in range(5):
        A(f"ds_read_b128 v[{72+4*i}:{75+4*i}], v5 offset:{L_XN2 + i*2048}")
    for a in range(32):
        A(f"v_mov_b32 v{96+a}, 0")
    A("s_waitcnt vmcnt(8) lgkmcnt(0)")
    A("s_cmp_lt_u32 s59, 8\ns_cbranch_scc1 L_b_w8\ns_waitcnt vmcnt(0)")
    A.label("L_b_w8")
    for i in range(5):
        for e in range(4):
            w = 32 + 4 * i + e
            A(f"v_lshlrev_b32 v5, 16, v{w}\nv_and_b32 v6, 0xffff0000, v{w}")
            for b in range(4):
                A(f"v_fmac_f32 v{96+8*b+2*e}, v5, v{72+4*i+b}\nv_fmac_f32 v{97+8*b+2*e}, v6, v{72+4*i+b}")
    R = [96 + a for a in range(32)]
    reduce32(A, R)
    A("v_lshrrev_b32 v5, 4, v1\nv_lshlrev_b32 v5, 7, v5\nv_and_b32 v6, 3, v1\nv_lshlrev_b32 v6, 5, v6\nv_add_u32 v5, v5, v6")
    A("v_bfe_u32 v6, v1, 2, 2\nv_lshlrev_b32 v6, 3, v6\nv_add_u32 v5, v5, v6\ns_lshl_b32 s64, s60, 9\nv_add_u32 v5, s64, v5")
    A("s_lshl_b32 s64, s61, 10\nv_add_u32 v5, s64, v5")
    A(f"ds_write_b64 v5, v[{R[0]}:{R[1]}] offset:{L_GUP}")
    A("s_waitcnt lgkmcnt(0)\ns_barrier")
    stamp(A)
    A("s_cmp_lt_u32 s59, 2\ns_cbranch_scc0 L_b_noact")
    A("v_lshlrev_b32 v5, 2, v0")
    for w in range(8):
        A(f"ds_read_b32 v{32+w}, v5 offset:{L_GUP + w*1024}\nds_read_b32 v{40+w}, v5 offset:{L_GUP + 512 + w*1024}")
    A("s_waitcnt lgkmcnt(0)")
    for base, dst in ((32, 12), (40, 13)):
        for w in range(4):
            A(f"v_add_f32 v{base+w}, v{base+w}, v{base+4+w}")
        A(f"v_add_f32 v{base}, v{base}, v{base+2}\nv_add_f32 v{base+1}, v{base+1}, v{base+3}\nv_add_f32 v{dst}, v{base}, v{base+1}")
    rne(A, 12)
    rne(A, 13)
    sigmoid_mul(A, 12, 14, 15)
    A("v_mul_f32 v14, v14, v12")
    rne(A, 14)
    A("v_mul_f32 v14, v14, v13")
    rne(A, 14)
    A("v_and_b32 v5, 31, v0\nv_lshlrev_b32 v5, 4, v5\nv_lshrrev_b32 v6, 5, v0\nv_lshlrev_b32 v6, 2, v6\nv_add_u32 v5, v5, v6")
    A(f"ds_write_b32 v5, v14 offset:{L_ACT}")
    A.label("L_b_noact")
    A("s_waitcnt lgkmcnt(0)\ns_barrier")
    stamp(A)
    A("s_cmp_lt_u32 s59, 8\ns_cbranch_scc0 L_b_nodown1")
    A("s_lshl_b32 s64, s59, 6\nv_mov_b32 v5, s64")
    for ii in range(4):
        A(f"ds_read_b128 v[{72+4*ii}:{75+4*ii}], v5 offset:{L_ACT + ii*16}")
    for a in range(40):
        A(f"v_mov_b32 v{88+a}, 0")
    A("s_waitcnt vmcnt(0) lgkmcnt(0)")
    for ii in range(4):
        for e in range(5):
            w = (52 + 4 * ii + e) if e < 4 else (68 + ii)
            A(f"v_lshlrev_b32 v5, 16, v{w}\nv_and_b32 v6, 0xffff0000, v{w}")
            for b in range(4):
                A(f"v_fmac_f32 v{88+10*b+2*e}, v5, v{72+4*ii+b}\nv_fmac_f32 v{89+10*b+2*e}, v6, v{72+4*ii+b}")
    A("s_mul_i32 s64, s59, 10240\nv_lshlrev_b32 v5, 5, v1\nv_add_u32 v5, s64, v5\nv_lshlrev_b32 v6, 3, v1\nv_add_u32 v6, s64, v6")
    for b in range(4):
        A(f"ds_write_b128 v5, v[{88+10*b}:{91+10*b}] offset:{L_YR + b*2560}")
        A(f"ds_write_b128 v5, v[{92+10*b}:{95+10*b}] offset:{L_YR + b*2560 + 16}")
        A(f"ds_write_b64 v6, v[{96+10*b}:{97+10*b}] offset:{L_YR + b*2560 + 2048}")
    A.label("L_b_nodown1")
    A("s_waitcnt lgkmcnt(0)\ns_barrier")
    stamp(A)
    A(f"s_mov_b32 s64, {WS_YACC}\nv_lshlrev_b32 v5, 2, v0")
    for k in range(3):
        A(f"v_add_u32 v6, {L_YR + k*4096}, v5")
        for w in range(8):
            A(f"ds_read_b32 v{32+8*k+w}, v6 offset:{w*10240 if w < 6 else 0}" if w < 6 else
              f"v_add_u32 v7, {w*10240}, v6\nds_read_b32 v{32+8*k+w}, v7")
    A("s_waitcnt lgkmcnt(0)")
    for k in range(3):
        r = 32 + 8 * k
        for w in range(4):
            A(f"v_add_f32 v{r+w}, v{r+w}, v{r+4+w}")
        A(f"v_add_f32 v{r}, v{r}, v{r+2}\nv_add_f32 v{r+1}, v{r+1}, v{r+3}\nv_add_f32 v{12+k}, v{r}, v{r+1}")
    A("buffer_atomic_add_f32 v12, v5, s[48:51], s64 offen")
    A(f"s_mov_b32 s64, {WS_YACC+4096}\ns_nop 0")
    A("buffer_atomic_add_f32 v13, v5, s[48:51], s64 offen")
    A("s_cmp_lt_u32 s59, 8\ns_cbranch_scc0 L_b_noat")
    A(f"s_mov_b32 s64, {WS_YACC+8192}\ns_nop 0")
    A("buffer_atomic_add_f32 v14, v5, s[48:51], s64 offen")
    A.label("L_b_noat")
    A("s_waitcnt vmcnt(0)\ns_barrier")
    stamp(A)
    A("s_cmp_eq_u32 s59, 0\ns_cbranch_scc0 L_b_noctr")
    A("v_mov_b32 v5, 1\nv_mov_b32 v6, 0\ns_mov_b64 exec, 1")
    A("buffer_atomic_add v5, v6, s[44:47], 0 offen sc0 sc1")
    A("s_waitcnt vmcnt(0)")
    A(f"ds_write_b32 v6, v5 offset:{L_FLAG}")
    A("s_mov_b64 exec, -1")
    A.label("L_b_noctr")
    A("s_waitcnt lgkmcnt(0)\ns_barrier")
    A(f"v_mov_b32 v6, 0\nds_read_b32 v5, v6 offset:{L_FLAG}\ns_waitcnt lgkmcnt(0)\nv_readfirstlane_b32 s64, v5\ns_nop 3")
    stamp(A)
    stamp_dump(A, WS_DBG + 0x300000)
    A(f"s_cmp_eq_u32 s64, {NWG_B-1}\ns_cbranch_scc0 L_endB")
    for k in range(3):
        if k == 2:
            A("s_cmp_lt_u32 s59, 8\ns_cbranch_scc0 L_endB")
        A(f"v_add_u32 v20, {1024*k}, v0")
        A(f"v_lshlrev_b32 v5, 2, v20\ns_mov_b32 s64, {WS_YACC}\ns_nop 0")
        A("buffer_load_dword v12, v5, s[48:51], s64 offen sc0 sc1")
        A(f"ds_read_b32 v13, v5 offset:{L_H}")
        A("v_mov_b32 v6, 0")
        for th in (640, 1280, 1920):
            A(f"v_cmp_le_u32 vcc, {th}, v20\ns_nop 1\nv_addc_co_u32 v6, vcc, 0, v6, vcc")
        A("v_mul_u32_u24 v7, 640, v6\nv_sub_u32 v7, v20, v7")
        A("v_lshlrev_b32 v7, 4, v7\nv_lshlrev_b32 v6, 2, v6\nv_add_u32 v7, v7, v6")
        A(f"ds_read_b32 v14, v7 offset:{L_XN2}\nds_read_b32 v15, v6 offset:{L_SIG}")
        A("s_waitcnt vmcnt(0) lgkmcnt(0)")
        rne(A, 12)
        A("v_mul_f32 v12, v12, v15")
        rne(A, 12)
        A("v_add_f32 v12, v12, v14")
        rne(A, 12)
        A("v_add_f32 v12, v12, v13")
        A("v_cvt_pk_bf16_f32 v12, v12, v12\nv_lshlrev_b32 v5, 1, v20")
        A("buffer_store_short v12, v5, s[72:75], 0 offen")
    A.label("L_endB")
    A("s_endpgm")


F_XN2 = 0
F_H = 10240
F_GUP = 20480
F_ACT = 24576
F_SIG = 25088
F_FLAG = 25104
F_YR = 25600
F_END = 25600 + 81920


GU = 190
DN = 230


def gen_mlp_fused(A):
    A("s_mov_b64 exec, -1")
    A("s_load_dwordx8 s[12:19], s[0:1], 48\ns_load_dwordx2 s[20:21], s[0:1], 80")
    A("s_waitcnt vmcnt(0) lgkmcnt(0)\ns_barrier")
    A("s_cmp_eq_u32 s59, 0\ns_cbranch_scc0 L_f_arr")
    A("v_mov_b32 v5, 1\nv_mov_b32 v6, 0\ns_mov_b64 exec, 1")
    A("buffer_atomic_add v5, v6, s[44:47], 0 offen offset:200 sc0 sc1")
    A("s_waitcnt vmcnt(0)")
    A(f"ds_write_b32 v6, v5 offset:{F_FLAG}")
    A("s_mov_b64 exec, -1")
    A.label("L_f_arr")
    A("s_waitcnt lgkmcnt(0)\ns_barrier")
    A(f"v_mov_b32 v6, 0\nds_read_b32 v5, v6 offset:{F_FLAG}\ns_waitcnt lgkmcnt(0)\nv_readfirstlane_b32 s2, v5\ns_nop 3")
    A(f"s_cmp_lt_u32 s2, {NWG_B}\ns_cbranch_scc0 L_f_end")
    srd(A, 28, 12, 13, 1280)
    srd(A, 32, 14, 15, WG_BYTES)
    srd(A, 36, 16, 17, WG_BYTES)
    srd(A, 68, 18, 19, WG_BYTES)
    srd(A, 72, 20, 21, 5120)
    A("s_and_b32 s60, s59, 1\ns_lshr_b32 s61, s59, 1")
    A("s_cmp_eq_u32 s60, 0\ns_cselect_b32 s52, s32, s36\ns_cselect_b32 s53, s33, s37\ns_mov_b32 s54, s34\ns_mov_b32 s55, s35")
    A("v_lshrrev_b32 v5, 2, v1\nv_mul_u32_u24 v5, 3072, v5\nv_and_b32 v6, 3, v1\nv_lshlrev_b32 v6, 4, v6\nv_add_u32 v9, v5, v6")
    A("v_lshlrev_b32 v28, 4, v1\nv_lshlrev_b32 v29, 2, v1")
    A("s_mul_i32 s65, s59, 1280")
    A("buffer_load_dwordx4 v[32:35], v28, s[24:27], s65 offen")
    A("buffer_load_dword v36, v29, s[24:27], s65 offen offset:1024")
    A("buffer_load_dwordx4 v[38:41], v28, s[28:31], 0 offen")
    A("buffer_load_dword v37, v29, s[28:31], 0 offen offset:1024")
    A("s_mul_i32 s64, s61, 49152\ns_lshl_b32 s65, s2, 6\ns_add_u32 s64, s64, s65")
    for i in range(10):
        A(f"buffer_load_dwordx4 v[{GU+4*i}:{GU+3+4*i}], v9, s[52:55], s64 offen\ns_add_u32 s64, s64, {64*3072}")
    A("s_lshl_b32 s64, s2, 5\ns_lshl_b32 s65, s59, 2\ns_add_u32 s64, s64, s65\ns_mul_i32 s64, s64, 1280")
    for ii in range(4):
        A(f"buffer_load_dwordx4 v[{DN+4*ii}:{DN+3+4*ii}], v28, s[68:71], s64 offen")
        A(f"buffer_load_dword v{DN+16+ii}, v29, s[68:71], s64 offen offset:1024")
        A("s_add_u32 s64, s64, 1280")
    A("s_cmp_eq_u32 s59, 0\ns_cbranch_scc0 L_f_w0done\nv_mov_b32 v6, 0")
    A.label("L_f_poll")
    A("buffer_load_dword v5, v6, s[44:47], 0 offen offset:200 sc0 sc1\ns_waitcnt vmcnt(0)\nv_readfirstlane_b32 s64, v5\ns_nop 3")
    A("s_cmp_eq_u32 s64, 256\ns_cbranch_scc0 L_f_poll")
    A.label("L_f_w0done")
    A("s_barrier")
    stamp(A)
    A("s_cmp_lt_u32 s59, 4\ns_cbranch_scc0 L_f_noln")
    A(f"s_mul_i32 s64, s59, 2560\ns_add_u32 s64, s64, {WS_HACC}")
    A("v_lshlrev_b32 v5, 5, v1\nv_lshlrev_b32 v6, 3, v1")
    A("buffer_load_dwordx4 v[42:45], v5, s[48:51], s64 offen sc0 sc1")
    A("buffer_load_dwordx4 v[46:49], v5, s[48:51], s64 offen offset:16 sc0 sc1")
    A("buffer_load_dwordx2 v[50:51], v6, s[48:51], s64 offen offset:2048 sc0 sc1")
    A("s_waitcnt vmcnt(0)")
    for e in range(10):
        rne(A, 42 + e)
    for e in range(4):
        A(f"v_lshlrev_b32 v{12+2*e}, 16, v{32+e}\nv_and_b32 v{13+2*e}, 0xffff0000, v{32+e}")
    A("v_lshlrev_b32 v20, 16, v36\nv_and_b32 v21, 0xffff0000, v36")
    for e in range(10):
        A(f"v_add_f32 v{12+e}, v{12+e}, v{42+e}")
        rne(A, 12 + e)
    A("s_mul_i32 s64, s59, 2560\nv_lshlrev_b32 v5, 5, v1\nv_add_u32 v5, s64, v5\nv_lshlrev_b32 v6, 3, v1\nv_add_u32 v6, s64, v6")
    A(f"ds_write_b128 v5, v[12:15] offset:{F_H}")
    A(f"ds_write_b128 v5, v[16:19] offset:{F_H+16}")
    A(f"ds_write_b64 v6, v[20:21] offset:{F_H+2048}")
    A("s_nop 1")
    layernorm10(A, 12, 22)
    A("s_lshl_b32 s64, s59, 2\nv_lshlrev_b32 v5, 7, v1\nv_add_u32 v5, s64, v5\nv_lshlrev_b32 v6, 5, v1\nv_add_u32 v6, s64, v6")
    for e in range(8):
        A(f"ds_write_b32 v5, v{12+e} offset:{F_XN2 + e*16}")
    for e in range(2):
        A(f"ds_write_b32 v6, v{20+e} offset:{F_XN2 + 8192 + e*16}")
    for e in range(4):
        A(f"v_lshlrev_b32 v{42+2*e}, 16, v{38+e}\nv_and_b32 v{43+2*e}, 0xffff0000, v{38+e}")
    A("v_lshlrev_b32 v50, 16, v37\nv_and_b32 v51, 0xffff0000, v37")
    A("v_mul_f32 v22, v12, v42")
    for e in range(1, 10):
        A(f"v_fmac_f32 v22, v{12+e}, v{42+e}")
    wave_reduce(A, "add", 22, 23)
    rne(A, 22)
    sigmoid_mul(A, 22, 24, 23)
    rne(A, 24)
    A(f"v_mov_b32 v5, s64\ns_mov_b64 exec, 1\nds_write_b32 v5, v24 offset:{F_SIG}\ns_mov_b64 exec, -1")
    A.label("L_f_noln")
    A("s_waitcnt lgkmcnt(0)\ns_barrier")
    stamp(A)
    A("s_lshl_b32 s64, s61, 8\nv_lshrrev_b32 v5, 2, v1\nv_lshlrev_b32 v5, 4, v5\nv_add_u32 v5, s64, v5")
    for i in range(10):
        A(f"ds_read_b128 v[{52+4*i}:{55+4*i}], v5 offset:{F_XN2 + i*1024}")
    for a in range(32):
        A(f"v_mov_b32 v{92+a}, 0")
    A("s_waitcnt vmcnt(0) lgkmcnt(0)")
    for i in range(10):
        for e in range(4):
            w = GU + 4 * i + e
            A(f"v_lshlrev_b32 v5, 16, v{w}\nv_and_b32 v6, 0xffff0000, v{w}")
            for b in range(4):
                A(f"v_fmac_f32 v{92+8*b+2*e}, v5, v{52+4*i+b}\nv_fmac_f32 v{93+8*b+2*e}, v6, v{52+4*i+b}")
    reduce32(A, [92 + a for a in range(32)])
    A("v_lshrrev_b32 v5, 4, v1\nv_lshlrev_b32 v5, 7, v5\nv_and_b32 v6, 3, v1\nv_lshlrev_b32 v6, 5, v6\nv_add_u32 v5, v5, v6")
    A("v_bfe_u32 v6, v1, 2, 2\nv_lshlrev_b32 v6, 3, v6\nv_add_u32 v5, v5, v6\ns_lshl_b32 s64, s59, 9\nv_add_u32 v5, s64, v5")
    A(f"ds_write_b64 v5, v[92:93] offset:{F_GUP}")
    A("s_waitcnt lgkmcnt(0)\ns_barrier")
    A("s_cmp_lt_u32 s59, 2\ns_cbranch_scc0 L_f_noact")
    A("v_lshlrev_b32 v5, 2, v0")
    for w in range(4):
        A(f"ds_read_b32 v{32+w}, v5 offset:{F_GUP + w*1024}\nds_read_b32 v{40+w}, v5 offset:{F_GUP + 512 + w*1024}")
    A("s_waitcnt lgkmcnt(0)")
    for base, dst in ((32, 12), (40, 13)):
        A(f"v_add_f32 v{base}, v{base}, v{base+2}\nv_add_f32 v{base+1}, v{base+1}, v{base+3}\nv_add_f32 v{dst}, v{base}, v{base+1}")
    rne(A, 12)
    rne(A, 13)
    sigmoid_mul(A, 12, 14, 15)
    A("v_mul_f32 v14, v14, v12")
    rne(A, 14)
    A("v_mul_f32 v14, v14, v13")
    rne(A, 14)
    A("v_and_b32 v5, 31, v0\nv_lshlrev_b32 v5, 4, v5\nv_lshrrev_b32 v6, 5, v0\nv_lshlrev_b32 v6, 2, v6\nv_add_u32 v5, v5, v6")
    A(f"ds_write_b32 v5, v14 offset:{F_ACT}")
    A.label("L_f_noact")
    A("s_waitcnt lgkmcnt(0)\ns_barrier")
    A("s_lshl_b32 s64, s59, 6\nv_mov_b32 v5, s64")
    for ii in range(4):
        A(f"ds_read_b128 v[{52+4*ii}:{55+4*ii}], v5 offset:{F_ACT + ii*16}")
    for a in range(40):
        A(f"v_mov_b32 v{92+a}, 0")
    A("s_waitcnt lgkmcnt(0)")
    for ii in range(4):
        for e in range(5):
            w = (DN + 4 * ii + e) if e < 4 else (DN + 16 + ii)
            A(f"v_lshlrev_b32 v5, 16, v{w}\nv_and_b32 v6, 0xffff0000, v{w}")
            for b in range(4):
                A(f"v_fmac_f32 v{92+10*b+2*e}, v5, v{52+4*ii+b}\nv_fmac_f32 v{93+10*b+2*e}, v6, v{52+4*ii+b}")
    A("s_mul_i32 s64, s59, 10240\nv_lshlrev_b32 v5, 5, v1\nv_add_u32 v5, s64, v5\nv_lshlrev_b32 v6, 3, v1\nv_add_u32 v6, s64, v6")
    for b in range(4):
        A(f"ds_write_b128 v5, v[{92+10*b}:{95+10*b}] offset:{F_YR + b*2560}")
        A(f"ds_write_b128 v5, v[{96+10*b}:{99+10*b}] offset:{F_YR + b*2560 + 16}")
        A(f"ds_write_b64 v6, v[{100+10*b}:{101+10*b}] offset:{F_YR + b*2560 + 2048}")
    A("s_waitcnt lgkmcnt(0)\ns_barrier")
    A("v_lshlrev_b32 v5, 2, v0")
    for k in range(5):
        A(f"v_add_u32 v6, {F_YR + k*2048}, v5")
        for w in range(8):
            A(f"ds_read_b32 v{32+8*k+w}, v6 offset:{w*10240}" if w < 6 else
              f"v_add_u32 v7, {w*10240}, v6\nds_read_b32 v{32+8*k+w}, v7")
    A("s_waitcnt lgkmcnt(0)")
    for k in range(5):
        r = 32 + 8 * k
        for w in range(4):
            A(f"v_add_f32 v{r+w}, v{r+w}, v{r+4+w}")
        A(f"v_add_f32 v{r}, v{r}, v{r+2}\nv_add_f32 v{r+1}, v{r+1}, v{r+3}\nv_add_f32 v{r}, v{r}, v{r+1}")
        A(f"s_mov_b32 s64, {WS_YACC + k*2048}\ns_nop 0")
        A(f"buffer_atomic_add_f32 v{r}, v5, s[48:51], s64 offen")
    A("s_waitcnt vmcnt(0)\ns_barrier")
    stamp(A)
    A("s_cmp_eq_u32 s59, 0\ns_cbranch_scc0 L_f_noctr")
    A("v_mov_b32 v5, 1\nv_mov_b32 v6, 0\ns_mov_b64 exec, 1")
    A("buffer_atomic_add v5, v6, s[44:47], 0 offen offset:204 sc0 sc1")
    A("s_waitcnt vmcnt(0)")
    A(f"ds_write_b32 v6, v5 offset:{F_FLAG}")
    A("s_mov_b64 exec, -1")
    A.label("L_f_noctr")
    A("s_waitcnt lgkmcnt(0)\ns_barrier")
    A(f"v_mov_b32 v6, 0\nds_read_b32 v5, v6 offset:{F_FLAG}\ns_waitcnt lgkmcnt(0)\nv_readfirstlane_b32 s64, v5\ns_nop 3")
    A(f"s_cmp_eq_u32 s64, {NWG_B-1}\ns_cbranch_scc0 L_f_end")
    for k in range(5):
        A(f"v_add_u32 v{20+k}, {512*k}, v0\nv_lshlrev_b32 v5, 2, v{20+k}\ns_mov_b32 s64, {WS_YACC}\ns_nop 0")
        A(f"buffer_load_dword v{32+k}, v5, s[48:51], s64 offen sc0 sc1")
        A(f"ds_read_b32 v{40+k}, v5 offset:{F_H}")
        A("v_mov_b32 v6, 0")
        for th in (640, 1280, 1920):
            A(f"v_cmp_le_u32 vcc, {th}, v{20+k}\ns_nop 1\nv_addc_co_u32 v6, vcc, 0, v6, vcc")
        A(f"v_mul_u32_u24 v7, 640, v6\nv_sub_u32 v7, v{20+k}, v7")
        A("v_lshlrev_b32 v7, 4, v7\nv_lshlrev_b32 v6, 2, v6\nv_add_u32 v7, v7, v6")
        A(f"ds_read_b32 v{48+k}, v7 offset:{F_XN2}\nds_read_b32 v{56+k}, v6 offset:{F_SIG}")
    A("s_waitcnt vmcnt(0) lgkmcnt(0)")
    for k in range(5):
        r = 32 + k
        rne(A, r)
        A(f"v_mul_f32 v{r}, v{r}, v{56+k}")
        rne(A, r)
        A(f"v_add_f32 v{r}, v{r}, v{48+k}")
        rne(A, r)
        A(f"v_add_f32 v{r}, v{r}, v{40+k}")
        A(f"v_cvt_pk_bf16_f32 v{r}, v{r}, v{r}\nv_lshlrev_b32 v5, 1, v{20+k}")
        A(f"buffer_store_short v{r}, v5, s[72:75], 0 offen")
    A.label("L_f_end")
```

```python
import sys

NAME = "sequential_preLN__mha_block_cached__moe_arch_mod__decode"
DEBUG = False

KV_BYTES = 4 * 32 * 8192 * 192 * 2
W_BYTES = 640 * 6144 * 2

WS_HACC = 0x0000
WS_YACC = 0x4000
WS_STATS = 0x8000
WS_CTR = 0x10000
WS_SCG = 0x20000
WS_DBG = 0x400000
WS_SIZE = 0x1000000

L_S = 0
L_XNP = 16384
L_QB = 24576
L_OV = 25344
L_WST = 26880
L_GST = 27008
L_IDS = 27040
L_QR = 27136
L_W = 27136
L_OQR = 0
L_OUTP = 27136
L_END_A = 27136 + 8 * 15360

SCALE = 0x3d93cd3a
LOG2E = 0x3fb8aa3b
INV640 = 0x3acccccd
EPS = 0x3727c5ac
NINF = 0xff800000


class Asm:
    def __init__(self):
        self.L = []

    def __call__(self, s):
        for line in s.split("\n"):
            line = line.strip()
            if line:
                self.L.append("  " + line)

    def label(self, l):
        self.L.append(l + ":")

    def raw(self, s):
        self.L.append(s)

    def text(self):
        return "\n".join(self.L) + "\n"


def srd(A, d, lo, hi, size):
    A(f"s_mov_b32 s{d}, s{lo}\ns_mov_b32 s{d+1}, s{hi}\ns_mov_b32 s{d+2}, {size}\ns_mov_b32 s{d+3}, 0x00020000")


def rne(A, r):
    A(f"v_cvt_pk_bf16_f32 v{r}, v{r}, v{r}\nv_lshlrev_b32 v{r}, 16, v{r}")


def wave_reduce(A, op, r, t, full=True):
    for dpp in ["quad_perm:[1,0,3,2]", "quad_perm:[2,3,0,1]", "row_half_mirror", "row_mirror"]:
        A(f"s_nop 1\nv_{op}_f32_dpp v{r}, v{r}, v{r} {dpp} row_mask:0xf bank_mask:0xf")
    A(f"v_mov_b32 v{t}, v{r}\ns_nop 1\nv_permlane16_swap_b32 v{r}, v{t}\ns_nop 1\nv_{op}_f32 v{r}, v{r}, v{t}")
    if full:
        A(f"v_mov_b32 v{t}, v{r}\ns_nop 1\nv_permlane32_swap_b32 v{r}, v{t}\ns_nop 1\nv_{op}_f32 v{r}, v{r}, v{t}")


TIMING = False
FUSED = True
import os
MAPPING = int(os.environ.get('MAPPING', '4'))
PACE_F = int(os.environ.get('PACE_F', '64'))
PACE = int(os.environ.get('PACE', '0'))
_stamp_n = [0]
def stamp(A, dup=False):
    if not TIMING:
        return
    n = _stamp_n[0]; _stamp_n[0] += 1
    if dup:
        n -= 1; _stamp_n[0] -= 1
    assert n < 12, n
    A(f"s_memrealtime s[96:97]\ns_waitcnt lgkmcnt(0)\ns_mov_b32 s{84+n}, s96")


def stamp_dump(A, base):
    if not TIMING:
        return
    A(f"s_lshl_b32 s98, s2, 4\ns_add_u32 s98, s98, s59\ns_lshl_b32 s98, s98, 6\ns_add_u32 s98, s98, {base}")
    A("v_mov_b32 v6, 0\ns_mov_b64 exec, 1")
    for n in range(_stamp_n[0]):
        A(f"v_mov_b32 v5, s{84+n}\nbuffer_store_dword v5, v6, s[48:51], s98 offen offset:{4*n}")
    A("s_mov_b64 exec, -1")
    _stamp_n[0] = 0


SB = 128
D = 32


def WQR(j):
    return 32 + 4 * j if j < 24 else SB + 64 + 4 * (j - 24)


def stream_issue(A, j, nt=True):
    r = SB + 4 * j
    A(f"buffer_load_dwordx3 v[{r}:{r+2}], v2, s[52:55], s62 offen nt")
    A("s_add_u32 s62, s62, 6144")


def k_slot(A, j, q, reissue=True, wait=D - 1):
    r = SB + 4 * j
    A(f"s_waitcnt vmcnt({wait})")
    A(f"v_dot2_f32_bf16 v{r+3}, v{r}, v{q}, 0")
    A(f"v_dot2_f32_bf16 v{r+3}, v{r+1}, v{q+1}, v{r+3}")
    A(f"v_dot2_f32_bf16 v{r+3}, v{r+2}, v{q+2}, v{r+3}")
    if reissue:
        stream_issue(A, j)


def k_group_reduce(A, g, tau):
    P = [SB + 4 * (8 * g + i) + 3 for i in range(8)]
    A("s_nop 1")
    for k in range(4):
        A(f"v_permlane16_swap_b32 v{P[2*k]}, v{P[2*k+1]}")
    A("s_nop 0")
    for k in range(4):
        A(f"v_add_f32 v{P[2*k]}, v{P[2*k]}, v{P[2*k+1]}")
    B = [P[0], P[2], P[4], P[6]]
    A("s_nop 0")
    A(f"v_add_f32_dpp v{B[0]}, v{B[0]}, v{B[0]} row_ror:8 row_mask:0xf bank_mask:0x3")
    A(f"v_add_f32_dpp v{B[2]}, v{B[2]}, v{B[2]} row_ror:8 row_mask:0xf bank_mask:0x3")
    A(f"v_add_f32_dpp v{B[0]}, v{B[1]}, v{B[1]} row_ror:8 row_mask:0xf bank_mask:0xc")
    A(f"v_add_f32_dpp v{B[2]}, v{B[3]}, v{B[3]} row_ror:8 row_mask:0xf bank_mask:0xc")
    A("s_nop 1")
    A(f"v_add_f32_dpp v{B[0]}, v{B[0]}, v{B[0]} row_half_mirror row_mask:0xf bank_mask:0x5")
    A(f"v_add_f32_dpp v{B[0]}, v{B[2]}, v{B[2]} row_half_mirror row_mask:0xf bank_mask:0xa")
    A("s_nop 1")
    A(f"v_add_f32_dpp v{B[0]}, v{B[0]}, v{B[0]} quad_perm:[1,0,3,2] row_mask:0xf bank_mask:0xf")
    A("s_nop 1")
    A(f"v_add_f32_dpp v{B[0]}, v{B[0]}, v{B[0]} quad_perm:[2,3,0,1] row_mask:0xf bank_mask:0xf")
    r = B[0]
    A(f"v_cvt_pk_bf16_f32 v{r}, v{r}, v{r}")
    A(f"v_lshlrev_b32 v{r}, 16, v{r}")
    A(f"v_mul_f32 v{r}, s82, v{r}")
    A(f"v_cvt_pk_bf16_f32 v{r}, v{r}, v{r}")
    A(f"v_lshlrev_b32 v{r}, 16, v{r}")
    A(f"v_max_f32 v4, v4, v{r}")
    A("s_mov_b64 exec, s[80:81]")
    A(f"ds_write_b32 v3, v{r} offset:{L_S + tau*8192 + g*32}")
    A("s_mov_b64 exec, -1")


def v_slot(A, j, acc, reissue=True, wait=D - 1, p=None):
    r = SB + 4 * j
    if p is None:
        p = 32 + j
    t = 26 + (j & 1)
    A(f"s_waitcnt vmcnt({wait})")
    A(f"v_lshlrev_b32 v{t}, 16, v{p}")
    A(f"v_dot2c_f32_bf16 v{acc+0}, v{r}, v{p}")
    A(f"v_dot2c_f32_bf16 v{acc+2}, v{r+1}, v{p}")
    A(f"v_dot2c_f32_bf16 v{acc+4}, v{r+2}, v{p}")
    A(f"v_dot2c_f32_bf16 v{acc+1}, v{r}, v{t}")
    A(f"v_dot2c_f32_bf16 v{acc+3}, v{r+1}, v{t}")
    A(f"v_dot2c_f32_bf16 v{acc+5}, v{r+2}, v{t}")
    if reissue:
        stream_issue(A, j)


def local_stats(A, tau):
    A("s_waitcnt lgkmcnt(0)")
    A(f"ds_read_b128 v[28:31], v7 offset:{L_S + tau*8192}")
    wave_reduce(A, "max", 4, 5)
    A("s_waitcnt lgkmcnt(0)")
    for e in range(4):
        A(f"v_sub_f32 v{28+e}, v{28+e}, v4")
    for e in range(4):
        A(f"v_mul_f32 v{28+e}, s83, v{28+e}")
    for e in range(4):
        A(f"v_exp_f32 v{28+e}, v{28+e}")
    A("s_nop 0")
    A("v_add_f32 v28, v28, v29\nv_add_f32 v30, v30, v31\nv_add_f32 v5, v28, v30")
    wave_reduce(A, "add", 5, 6)
    A("s_lshl_b32 s64, s59, 3\nv_mov_b32 v6, s64")
    A("s_mov_b64 exec, 1")
    A(f"ds_write_b64 v6, v[4:5] offset:{L_WST + tau*64}")
    A("s_mov_b64 exec, -1")
    A(f"v_mov_b32 v4, {NINF:#x}")


def combine8(A, m, l, n_full):
    A(f"v_mov_b32 v5, v{m}")
    for dpp in ["quad_perm:[1,0,3,2]", "quad_perm:[2,3,0,1]", "row_half_mirror"][:n_full]:
        A(f"s_nop 1\nv_max_f32_dpp v5, v5, v5 {dpp} row_mask:0xf bank_mask:0xf")
    A(f"v_sub_f32 v{m}, v{m}, v5\nv_mul_f32 v{m}, s83, v{m}\nv_exp_f32 v{m}, v{m}\ns_nop 0\nv_mul_f32 v{l}, v{l}, v{m}")
    for dpp in ["quad_perm:[1,0,3,2]", "quad_perm:[2,3,0,1]", "row_half_mirror"][:n_full]:
        A(f"s_nop 1\nv_add_f32_dpp v{l}, v{l}, v{l} {dpp} row_mask:0xf bank_mask:0xf")
    A(f"v_mov_b32 v{m}, v5")


def wg_publish_payload(A, tau):
    A("v_and_b32 v6, 7, v1\nv_lshlrev_b32 v6, 3, v6")
    A(f"ds_read_b64 v[30:31], v6 offset:{L_WST + tau*64}\ns_waitcnt lgkmcnt(0)")
    combine8(A, 30, 31, 3)
    A("v_mov_b32 v6, 0\ns_mov_b64 exec, 1")
    A(f"buffer_store_dwordx2 v[30:31], v6, s[48:51], s{72+tau} offen sc0 sc1")
    A("s_mov_b64 exec, -1")


def flag_add(A, tau):
    A("v_mov_b32 v6, 0\nv_mov_b32 v5, s79")
    A("s_mov_b64 exec, 1")
    A(f"buffer_atomic_add v5, v6, s[44:47], s{76+tau} offen sc1")
    A("s_mov_b64 exec, -1")


def poll_issue(A, tau):
    A("v_mov_b32 v6, 0")
    A(f"buffer_load_dword v126, v6, s[44:47], s{76+tau} offen sc0 sc1")


def poll_check_and_payload(A, tau, name):
    A("v_readfirstlane_b32 s64, v126")
    A("s_nop 3")
    A.label(f"L_chk_{name}")
    A("s_lshr_b32 s64, s64, s78\ns_and_b32 s64, s64, 0xff\ns_cmp_eq_u32 s64, 4")
    A(f"s_cbranch_scc1 L_ok_{name}")
    A("s_sleep 8")
    poll_issue(A, tau)
    A("s_waitcnt vmcnt(0)\nv_readfirstlane_b32 s64, v126\ns_nop 3")
    A(f"s_branch L_chk_{name}")
    A.label(f"L_ok_{name}")
    A("v_and_b32 v6, 3, v1\nv_lshlrev_b32 v6, 3, v6")
    A(f"buffer_load_dwordx2 v[124:125], v6, s[48:51], s{74+tau} offen sc0 sc1")


def global_stats(A, tau):
    combine8(A, 124, 125, 2)
    A("v_rcp_f32 v6, v125\ns_nop 0")
    A("v_fma_f32 v5, -v125, v6, 1.0\nv_fma_f32 v125, v5, v6, v6")
    A("v_mov_b32 v6, 0\ns_mov_b64 exec, 1")
    A(f"ds_write_b64 v6, v[124:125] offset:{L_GST + tau*8}")
    A("s_mov_b64 exec, -1")


def scores_to_p(A, tau):
    A("v_mov_b32 v6, 0")
    A(f"ds_read_b128 v[26:29], v7 offset:{L_S + tau*8192}")
    A(f"ds_read_b64 v[30:31], v6 offset:{L_GST + tau*8}")
    A("s_waitcnt lgkmcnt(0)")
    for e in range(4):
        A(f"v_sub_f32 v{26+e}, v{26+e}, v30")
    for e in range(4):
        A(f"v_mul_f32 v{26+e}, s83, v{26+e}")
    for e in range(4):
        A(f"v_exp_f32 v{26+e}, v{26+e}")
    A("s_nop 0")
    for e in range(4):
        A(f"v_mul_f32 v{26+e}, v{26+e}, v31")
    for e in range(4):
        A(f"v_cvt_pk_bf16_f32 v{26+e}, v{26+e}, v6")
    A(f"ds_write_b128 v7, v[26:29] offset:{L_S + tau*8192}")
    A("s_waitcnt lgkmcnt(0)")


def switch_stream(A, srd_base, off_sreg):
    A(f"s_mov_b32 s52, s{srd_base}\ns_mov_b32 s53, s{srd_base+1}\ns_mov_b32 s54, s{srd_base+2}\ns_mov_b32 s55, s{srd_base+3}")
    A(f"s_mov_b32 s62, s{off_sreg}")


def grab_id(A, r):
    A(f"v_mov_b32 v{r}, 1\nv_mov_b32 v6, 0\ns_mov_b64 exec, 1")
    A(f"buffer_atomic_add v{r}, v6, s[48:51], s11 offen sc0 sc1")
    A("s_mov_b64 exec, -1")


def score_loads(A, idreg, rset):
    A(f"s_lshr_b32 s64, s{idreg}, 3\ns_lshl_b32 s64, s64, 13\ns_and_b32 s65, s{idreg}, 7\ns_lshl_b32 s65, s65, 6")
    A("s_add_u32 s64, s64, s65\ns_add_u32 s64, s64, s9")
    for k in range(4):
        A(f"buffer_load_dwordx4 v[{rset+4*k}:{rset+4*k+3}], v29, s[48:51], s64 offen offset:{16*k} sc0 sc1")


_pace_n = [0]
def pace(A):
    if not PACE:
        return
    n = _pace_n[0]; _pace_n[0] += 1
    A(f"s_cmp_eq_u32 s59, 0\ns_cbranch_scc0 L_pc{n}_x")
    A(f"s_cmp_eq_u32 s19, 0\ns_cbranch_scc1 L_pc{n}_go")
    A("v_readfirstlane_b32 s64, v121\ns_lshl_b32 s65, s19, 8\ns_nop 2")
    A(f"s_sub_u32 s64, s65, s64\ns_cmp_lt_i32 s64, {PACE}\ns_cbranch_scc1 L_pc{n}_go")
    A.label(f"L_pc{n}_t")
    A("v_mov_b32 v6, 0\nbuffer_load_dword v121, v6, s[44:47], 0 offen offset:208 sc0 sc1\ns_waitcnt vmcnt(0)\nv_readfirstlane_b32 s64, v121\ns_nop 3")
    assert PACE_F > 0
    A(f"s_sub_u32 s64, s65, s64\ns_cmp_lt_i32 s64, {PACE_F}\ns_cbranch_scc1 L_pc{n}_go\ns_sleep 8\ns_branch L_pc{n}_t")
    A.label(f"L_pc{n}_go")
    A("v_mov_b32 v121, 1\nv_mov_b32 v6, 0\ns_mov_b64 exec, 1")
    A("buffer_atomic_add v121, v6, s[44:47], 0 offen offset:208 sc0 sc1")
    A("s_mov_b64 exec, -1")
    A.label(f"L_pc{n}_x")
    A("s_add_u32 s19, s19, 1")


def hooks(A, tau, name):
    A(f"s_cmp_eq_u32 s59, 0\ns_cbranch_scc0 L_{name}_hx")
    A(f"s_cmp_eq_u32 s63, 0\ns_cbranch_scc0 L_{name}_a")
    wg_publish_payload(A, tau)
    if tau == 1:
        A("v_mov_b32 v6, 0\nbuffer_load_dword v127, v6, s[44:47], 0 offen offset:160 sc0 sc1")
    A(f"s_branch L_{name}_hx")
    A.label(f"L_{name}_a")
    A(f"s_cmp_eq_u32 s63, 1\ns_cbranch_scc0 L_{name}_b")
    flag_add(A, tau)
    if tau == 1:
        A.label("L_zf")
        A("v_readfirstlane_b32 s64, v127\ns_nop 3\ns_cmp_eq_u32 s64, 1\ns_cbranch_scc1 L_zf_ok\ns_sleep 8")
        A("v_mov_b32 v6, 0\nbuffer_load_dword v127, v6, s[44:47], 0 offen offset:160 sc0 sc1\ns_waitcnt vmcnt(0)\ns_branch L_zf")
        A.label("L_zf_ok")
        grab_id(A, 122)
    A(f"s_branch L_{name}_hx")
    A.label(f"L_{name}_b")
    A(f"s_cmp_eq_u32 s63, 2\ns_cbranch_scc0 L_{name}_c")
    poll_issue(A, tau)
    if tau == 1:
        grab_id(A, 123)
    A(f"s_branch L_{name}_hx")
    A.label(f"L_{name}_c")
    poll_check_and_payload(A, tau, name)
    A.label(f"L_{name}_hx")


def gen_attn(A):
    A.raw(".globl attn_kernel\n.p2align 8\n.type attn_kernel,@function\nattn_kernel:")
    A("s_cmp_ge_u32 s2, 256\ns_cbranch_scc1 L_endA")
    A("s_load_dwordx8 s[8:15], s[0:1], 0")
    A("s_load_dwordx2 s[16:17], s[0:1], 32")
    A("s_load_dwordx4 s[20:23], s[0:1], 88")
    A("v_and_b32 v1, 63, v0\nv_lshrrev_b32 v5, 6, v0\ns_nop 0\nv_readfirstlane_b32 s59, v5")
    if MAPPING == 4:
        A("s_and_b32 s64, s2, 1\ns_lshr_b32 s56, s2, 4\ns_lshl_b32 s56, s56, 1\ns_add_u32 s56, s56, s64")
        A("s_bfe_u32 s57, s2, 0x10003\ns_bfe_u32 s58, s2, 0x20001")
    elif MAPPING == 5:
        A("s_lshr_b32 s64, s2, 1\ns_xor_b32 s64, s64, s2\ns_and_b32 s64, s64, 1\ns_lshr_b32 s56, s2, 4\ns_lshl_b32 s56, s56, 1\ns_add_u32 s56, s56, s64")
        A("s_bfe_u32 s57, s2, 0x10003\ns_bfe_u32 s58, s2, 0x20001")
    else:
        A("s_and_b32 s56, s2, 31\ns_lshr_b32 s64, s2, 5\ns_lshr_b32 s57, s64, 2\ns_and_b32 s58, s64, 3")
    A("v_mul_u32_u24 v2, 12, v1")
    A(f"s_mov_b32 s82, {SCALE:#x}\ns_mov_b32 s83, {LOG2E:#x}")
    A("s_mov_b32 s80, 0x11111111\ns_mov_b32 s81, 0x11111111")
    A("s_lshl_b32 s65, s57, 6\ns_add_u32 s65, s65, s56\ns_add_u32 s66, s65, 32")
    A("s_mul_i32 s67, s58, 786432\ns_mul_i32 s68, s59, 768\ns_add_u32 s67, s67, s68")
    A("s_mul_i32 s60, s65, 3145728\ns_add_u32 s60, s60, s67")
    A("s_add_u32 s61, s60, 100663296")
    A("s_lshl_b32 s68, s58, 3")
    A(f"s_lshl_b32 s74, s65, 7\ns_add_u32 s74, s74, {WS_STATS}\ns_add_u32 s75, s74, 4096")
    A("s_add_u32 s72, s74, s68\ns_add_u32 s73, s75, s68")
    A("s_lshr_b32 s76, s65, 2\ns_lshl_b32 s76, s76, 2\ns_add_u32 s77, s76, 32")
    A("s_and_b32 s78, s56, 3\ns_lshl_b32 s78, s78, 3\ns_lshl_b32 s79, 1, s78")
    A("s_waitcnt lgkmcnt(0)")
    stamp(A)
    srd(A, 24, 8, 9, 5120)
    srd(A, 28, 10, 11, KV_BYTES)
    srd(A, 32, 12, 13, KV_BYTES)
    srd(A, 36, 14, 15, W_BYTES)
    srd(A, 40, 16, 17, W_BYTES)
    srd(A, 44, 20, 21, 256)
    srd(A, 48, 22, 23, WS_SIZE)
    A("s_mul_i32 s8, s66, 3145728\ns_mul_i32 s64, s59, 768\ns_add_u32 s8, s8, s64")
    A("s_lshl_b32 s64, s56, 1\ns_add_u32 s64, s64, s57")
    A(f"s_lshl_b32 s9, s64, 15\ns_lshl_b32 s68, s59, 10\ns_add_u32 s9, s9, s68\ns_add_u32 s9, s9, {WS_SCG}")
    A("s_lshl_b32 s68, s58, 13\ns_add_u32 s10, s9, s68")
    A(f"s_lshl_b32 s11, s64, 7\ns_add_u32 s11, s11, {WS_CTR}")
    A("s_cmp_eq_u32 s2, 0\ns_cbranch_scc0 L_nozero\ns_cmp_eq_u32 s59, 7\ns_cbranch_scc0 L_nozero")
    A("v_mov_b32 v8, 0\nv_mov_b32 v9, 0\nv_mov_b32 v10, 0\nv_mov_b32 v11, 0\nv_lshlrev_b32 v5, 4, v1")
    for i in range(10):
        A(f"buffer_store_dwordx4 v[8:11], v5, s[48:51], 0 offen offset:{i*1024 if i < 4 else 0} sc0 sc1" if i < 4 else
          f"s_mov_b32 s64, {WS_HACC + i*1024}\nbuffer_store_dwordx4 v[8:11], v5, s[48:51], s64 offen sc0 sc1")
    for i in range(10):
        A(f"s_mov_b32 s64, {WS_YACC + i*1024}\nbuffer_store_dwordx4 v[8:11], v5, s[48:51], s64 offen sc0 sc1")
    for i in range(8):
        A(f"s_mov_b32 s64, {WS_CTR + i*1024}\nbuffer_store_dwordx4 v[8:11], v5, s[48:51], s64 offen sc0 sc1")
    A.label("L_nozero")
    A("v_lshrrev_b32 v5, 4, v1")
    A("v_bfe_u32 v6, v1, 2, 2")
    A("v_and_b32 v7, 1, v6\nv_lshlrev_b32 v7, 1, v7\nv_lshrrev_b32 v6, 1, v6\nv_add_u32 v6, v6, v7")
    A("v_lshlrev_b32 v6, 1, v6\nv_and_b32 v7, 1, v5\nv_add_u32 v6, v6, v7")
    A("v_lshrrev_b32 v5, 1, v5")
    A("v_lshlrev_b32 v5, 9, v5\nv_lshlrev_b32 v6, 2, v6\nv_add_u32 v3, v5, v6")
    A("s_lshl_b32 s64, s59, 10\nv_add_u32 v3, s64, v3")
    A("v_lshlrev_b32 v7, 4, v1\nv_add_u32 v7, s64, v7")
    A(f"v_mov_b32 v4, {NINF:#x}")
    A("v_lshrrev_b32 v5, 5, v1\nv_mul_u32_u24 v5, 12288, v5\nv_and_b32 v6, 31, v1\nv_mul_u32_u24 v6, 12, v6\nv_add_u32 v26, v5, v6")
    A("s_mul_i32 s69, s56, 384\ns_mul_i32 s68, s59, 24576\ns_add_u32 s69, s69, s68")
    A("s_cmp_lt_u32 s59, 2\ns_cbranch_scc0 L_ln_done")
    A("s_lshl_b32 s68, s57, 1\ns_add_u32 s64, s59, s68\ns_mul_i32 s64, s64, 1280")
    A("v_lshlrev_b32 v5, 4, v1\nv_lshlrev_b32 v6, 2, v1")
    A("buffer_load_dwordx4 v[28:31], v5, s[24:27], s64 offen")
    A("buffer_load_dword v25, v6, s[24:27], s64 offen offset:1024")
    A("s_waitcnt vmcnt(0)")
    for e in range(4):
        A(f"v_lshlrev_b32 v{8+2*e}, 16, v{28+e}\nv_and_b32 v{9+2*e}, 0xffff0000, v{28+e}")
    A("v_lshlrev_b32 v16, 16, v25\nv_and_b32 v17, 0xffff0000, v25")
    layernorm10(A, 8, 18)
    A("v_mov_b32 v6, 0")
    for e in range(10):
        A(f"v_cvt_pk_bf16_f32 v{8+e}, v{8+e}, v6")
    A("v_and_b32 v5, 1, v1\nv_mul_u32_u24 v5, 1280, v5\nv_lshrrev_b32 v6, 1, v1\nv_lshlrev_b32 v6, 2, v6\nv_add_u32 v5, v5, v6")
    A("s_mul_i32 s64, s59, 2560\nv_add_u32 v5, s64, v5")
    for e in range(8):
        A(f"ds_write_b32 v5, v{8+e} offset:{L_XNP + e*160}")
    A("v_and_b32 v5, 7, v1\nv_mul_u32_u24 v5, 320, v5\nv_lshrrev_b32 v6, 3, v1\nv_lshlrev_b32 v6, 2, v6\nv_add_u32 v5, v5, v6")
    A("v_add_u32 v5, s64, v5")
    for e in range(2):
        A(f"ds_write_b32 v5, v{16+e} offset:{L_XNP + 128 + e*160}")
    A.label("L_ln_done")
    for j in range(40):
        w = WQR(j)
        A(f"buffer_load_dwordx3 v[{w}:{w+2}], v26, s[36:39], s69 offen\ns_add_u32 s69, s69, {8*24576}")
    stamp(A)
    A("s_waitcnt lgkmcnt(0)\ns_barrier")
    switch_stream(A, 28, 60)
    for i in range(12):
        A(f"v_mov_b32 v{14+i}, 0")
    A("v_lshrrev_b32 v5, 5, v1\ns_lshl_b32 s64, s59, 1\nv_add_u32 v5, s64, v5\nv_mul_u32_u24 v27, 160, v5")
    nk = 0
    for c in range(10):
        A(f"ds_read_b128 v[8:11], v27 offset:{L_XNP + c*16}")
        A(f"ds_read_b128 v[28:31], v27 offset:{L_XNP + 2560 + c*16}")
        for jj in range(4):
            j = c * 4 + jj
            w = WQR(j)
            A(f"s_waitcnt vmcnt({39 - j + nk})" + (" lgkmcnt(0)" if jj == 0 else ""))
            if jj == 0:
                for q in range(4):
                    A(f"v_lshlrev_b32 v{8+q}, 16, v{8+q}\nv_lshlrev_b32 v{28+q}, 16, v{28+q}")
            for e in range(3):
                A(f"v_lshlrev_b32 v5, 16, v{w+e}\nv_and_b32 v6, 0xffff0000, v{w+e}")
                A(f"v_fmac_f32 v{14+2*e}, v5, v{8+jj}\nv_fmac_f32 v{15+2*e}, v6, v{8+jj}")
                A(f"v_fmac_f32 v{20+2*e}, v5, v{28+jj}\nv_fmac_f32 v{21+2*e}, v6, v{28+jj}")
            if j < 16:
                stream_issue(A, j); nk += 1
            elif j >= 24:
                stream_issue(A, 16 + j - 24); nk += 1
        if c == 0:
            A("s_cmp_eq_u32 s2, 0\ns_cbranch_scc0 L_nozf\ns_cmp_eq_u32 s59, 7\ns_cbranch_scc0 L_nozf")
            A("v_mov_b32 v5, 1\nv_mov_b32 v6, 0\ns_mov_b64 exec, 1")
            A("buffer_store_dword v5, v6, s[44:47], 0 offen offset:160 sc0 sc1")
            A("s_mov_b64 exec, -1")
            A.label("L_nozf")
    cross_wave_reduce_192(A, "q")
    A("v_and_b32 v5, 31, v1\nv_mul_u32_u24 v5, 12, v5")
    for tau in range(2):
        for e in range(3):
            A(f"ds_read_b32 v{8+3*tau+e}, v5 offset:{L_QB + tau*384 + e*4}")
    A("s_waitcnt lgkmcnt(0)")
    if DEBUG:
        A("s_cmp_eq_u32 s59, 0\ns_cbranch_scc0 L_dbgq")
        A(f"s_lshl_b32 s64, s2, 12\ns_add_u32 s64, s64, {WS_DBG}\nv_lshlrev_b32 v5, 5, v1")
        for i in range(6):
            A(f"buffer_store_dword v{8+i}, v5, s[48:51], s64 offen offset:{i*4}")
        A.label("L_dbgq")

    stamp(A)
    A("s_mov_b32 s19, 0")
    for tau in range(2):
        A("s_mov_b32 s63, 0")
        A.label(f"L_K{tau}")
        pace(A)
        A("s_waitcnt lgkmcnt(0)\ns_barrier")
        A(f"s_cmp_eq_u32 s63, 3\ns_cbranch_scc0 L_K{tau}_h3")
        if tau == 0:
            switch_stream(A, 28, 61)
        else:
            switch_stream(A, 32, 60)
        A.label(f"L_K{tau}_h3")
        if tau == 1:
            hooks(A, 0, "K1")
        for g in range(4):
            for i in range(8):
                k_slot(A, 8 * g + i, 8 + 3 * tau)
            k_group_reduce(A, g, tau)
        A("v_add_u32 v3, 128, v3")
        A(f"s_add_u32 s63, s63, 1\ns_cmp_lt_u32 s63, 4\ns_cbranch_scc1 L_K{tau}")
        A("v_subrev_u32 v3, 512, v3")
        local_stats(A, tau)
        stamp(A)
    A("s_cmp_eq_u32 s59, 0\ns_cbranch_scc0 L_gs0")
    global_stats(A, 0)
    A.label("L_gs0")
    for i in range(12):
        A(f"v_mov_b32 v{14+i}, 0")
    A(f"ds_read_b128 v[26:29], v7 offset:{L_S + 8192}\nv_lshlrev_b32 v5, 4, v1\ns_waitcnt lgkmcnt(0)")
    A("buffer_store_dwordx4 v[26:29], v5, s[48:51], s10 offen sc0 sc1")
    A("v_lshrrev_b32 v5, 5, v1\nv_lshlrev_b32 v5, 9, v5\ns_lshl_b32 s64, s59, 10\nv_add_u32 v3, s64, v5")
    A("s_mov_b32 s63, 0")
    A.label("L_V0")
    pace(A)
    A("s_waitcnt lgkmcnt(0)\ns_barrier")
    A("s_cmp_eq_u32 s63, 0\ns_cbranch_scc0 L_V0_h0")
    scores_to_p(A, 0)
    A.label("L_V0_h0")
    A("s_cmp_eq_u32 s63, 3\ns_cbranch_scc0 L_V0_h3")
    switch_stream(A, 32, 61)
    A("v_lshrrev_b32 v29, 5, v1\nv_lshlrev_b32 v29, 9, v29")
    A("s_lshl_b32 s12, s58, 3\ns_add_u32 s13, s12, 1")
    score_loads(A, 12, 64)
    score_loads(A, 13, 80)
    A.label("L_V0_h3")
    hooks(A, 1, "V0")
    A("s_mul_i32 s64, s56, 192\ns_mul_i32 s68, s59, 24\ns_add_u32 s64, s64, s68\ns_mul_i32 s64, s64, 1280\ns_lshl_b32 s68, s63, 12\ns_add_u32 s64, s64, s68")
    A(f"s_mul_i32 s65, s59, 15360\ns_add_u32 s65, s65, s68\ns_add_u32 s65, s65, {L_W}\nv_lshlrev_b32 v5, 4, v1")
    for k in range(4):
        if k == 3:
            A("s_cmp_eq_u32 s63, 3\ns_cbranch_scc1 L_V0_nd")
        A(f"s_mov_b32 m0, s65\ns_add_u32 s65, s65, 1024")
        A("buffer_load_dwordx4 v5, s[40:43], s64 offen lds\ns_add_u32 s64, s64, 1024")
    A.label("L_V0_nd")
    for c in range(8):
        A(f"ds_read_b128 v[{32+4*c}:{35+4*c}], v3 offset:{L_S + c*16}")
    A("s_waitcnt lgkmcnt(0)")
    for j in range(D):
        v_slot(A, j, 14)
    A("v_add_u32 v3, 128, v3")
    A("s_add_u32 s63, s63, 1\ns_cmp_lt_u32 s63, 4\ns_cbranch_scc1 L_V0")
    A("s_cmp_eq_u32 s59, 0\ns_cbranch_scc0 L_gs1")
    global_stats(A, 1)
    A.label("L_gs1")
    stamp(A)
    A("s_mov_b32 s15, 0")
    A.label("L_V1")
    for par in range(2):
        A(f"s_cmp_eq_u32 s59, 0\ns_cbranch_scc0 L_V1_w{par}")
        A(f"s_waitcnt vmcnt(41)\nv_readfirstlane_b32 s64, v{122+par}\ns_nop 3")
        A("s_mul_i32 s65, s64, 43\ns_lshr_b32 s65, s65, 8\ns_mul_i32 s68, s65, 6\ns_sub_u32 s68, s64, s68\ns_lshl_b32 s65, s65, 3\ns_add_u32 s65, s65, s68\ns_add_u32 s65, s65, 2")
        A("s_cmp_lt_u32 s64, 24\ns_cselect_b32 s65, s65, 32")
        A(f"v_mov_b32 v5, s65\nv_mov_b32 v6, 0\ns_mov_b64 exec, 1\nds_write_b32 v6, v5 offset:{L_IDS + 4*par}\ns_mov_b64 exec, -1")
        grab_id(A, 122 + par)
        A.label(f"L_V1_w{par}")
        A("s_waitcnt lgkmcnt(0)\ns_barrier")
        A("s_cmp_ge_u32 s12, 32\ns_cbranch_scc1 L_V1_done")
        A(f"v_mov_b32 v6, 0\nds_read_b32 v5, v6 offset:{L_IDS + 4*par}")
        A("s_cmp_eq_u32 s15, 0\ns_cbranch_scc0 L_V1_ng%d" % par)
        A(f"ds_read_b64 v[30:31], v6 offset:{L_GST + 8}")
        A.label("L_V1_ng%d" % par)
        A("s_waitcnt vmcnt(36) lgkmcnt(0)\nv_readfirstlane_b32 s14, v5")
        R = 64 + 16 * par
        for e in range(16):
            A(f"v_sub_f32 v{32+e}, v{R+e}, v30")
        for e in range(16):
            A(f"v_mul_f32 v{32+e}, s83, v{32+e}")
        for e in range(16):
            A(f"v_exp_f32 v{32+e}, v{32+e}")
        A("v_mov_b32 v6, 0")
        for e in range(16):
            A(f"v_mul_f32 v{32+e}, v{32+e}, v31")
        for e in range(16):
            A(f"v_cvt_pk_bf16_f32 v{32+e}, v{32+e}, v6")
        score_loads(A, 14, R)
        A("s_mul_i32 s62, s14, 98304\ns_add_u32 s62, s62, s8")
        A(f"s_cmp_lt_u32 s14, 32\ns_cselect_b32 s54, {KV_BYTES}, 0")
        for jj in range(16):
            v_slot(A, 16 * par + jj, 20, p=32 + jj)
        A("s_mov_b32 s12, s13\ns_mov_b32 s13, s14\ns_add_u32 s15, s15, 1")
    A("s_branch L_V1")
    A.label("L_V1_done")
    A("s_waitcnt vmcnt(0)")
    stamp(A)
    A("s_mul_i32 s64, s56, 192\ns_mul_i32 s68, s59, 24\ns_add_u32 s64, s64, s68\ns_add_u32 s64, s64, 12\ns_mul_i32 s64, s64, 1280")
    A("v_lshlrev_b32 v28, 4, v1\nv_lshlrev_b32 v29, 2, v1")
    for ii in range(12):
        A(f"buffer_load_dwordx4 v[{32+4*ii}:{35+4*ii}], v28, s[40:43], s64 offen")
        A(f"buffer_load_dword v{80+ii}, v29, s[40:43], s64 offen offset:1024")
        A("s_add_u32 s64, s64, 1280")

    cross_wave_reduce_192(A, "o")
    stamp(A)
    A("s_mul_i32 s64, s59, 192\nv_mov_b32 v7, s64")
    for c in range(12):
        A(f"ds_read_b128 v[{122+4*c}:{125+4*c}], v7 offset:{L_OV + c*16}")
    for i in range(20):
        A(f"v_mov_b32 v{170+i}, 0")
    A(f"s_mul_i32 s64, s59, 15360\nv_add_u32 v26, s64, v28\nv_add_u32 v27, s64, v29")

    def fma_row(ii, wr):
        o0 = 122 + 2 * ii
        for e in range(5):
            w = wr[e]
            A(f"v_lshlrev_b32 v5, 16, v{w}\nv_and_b32 v6, 0xffff0000, v{w}")
            A(f"v_fmac_f32 v{170+2*e}, v5, v{o0}\nv_fmac_f32 v{171+2*e}, v6, v{o0}")
            A(f"v_fmac_f32 v{180+2*e}, v5, v{o0+1}\nv_fmac_f32 v{181+2*e}, v6, v{o0+1}")
    for half in range(2):
        for r in range(6):
            ii = half * 6 + r
            A(f"ds_read_b128 v[{92+4*r}:{95+4*r}], v26 offset:{L_W + ii*1280}")
            A(f"ds_read_b32 v{116+r}, v27 offset:{L_W + ii*1280 + 1024}")
        A("s_waitcnt lgkmcnt(0)")
        for r in range(6):
            fma_row(half * 6 + r, [92 + 4 * r + e for e in range(4)] + [116 + r])
    A("s_waitcnt vmcnt(0)")
    for ii in range(12, 24):
        fma_row(ii, [32 + 4 * (ii - 12) + e for e in range(4)] + [80 + ii - 12])
    A("s_barrier")
    A("s_mul_i32 s64, s59, 5120\nv_lshlrev_b32 v5, 5, v1\nv_add_u32 v5, s64, v5\nv_lshlrev_b32 v6, 3, v1\nv_add_u32 v6, s64, v6")
    for tau in range(2):
        A(f"ds_write_b128 v5, v[{170+10*tau}:{173+10*tau}] offset:{L_OUTP + tau*2560}")
        A(f"ds_write_b128 v5, v[{174+10*tau}:{177+10*tau}] offset:{L_OUTP + tau*2560 + 16}")
        A(f"ds_write_b64 v6, v[{178+10*tau}:{179+10*tau}] offset:{L_OUTP + tau*2560 + 2048}")
    A("s_waitcnt lgkmcnt(0)\ns_barrier")
    A(f"s_mul_i32 s64, s57, 5120\ns_add_u32 s64, s64, {WS_HACC}\nv_lshlrev_b32 v5, 2, v0\nv_add_u32 v6, {L_OUTP}, v5")
    for k in range(3):
        for w in range(8):
            A(f"ds_read_b32 v{8+8*k+w}, v6 offset:{k*2048 + w*5120}")
    A("s_waitcnt lgkmcnt(0)")
    for k in range(3):
        r = 8 + 8 * k
        for w in range(4):
            A(f"v_add_f32 v{r+w}, v{r+w}, v{r+4+w}")
        A(f"v_add_f32 v{r}, v{r}, v{r+2}\nv_add_f32 v{r+1}, v{r+1}, v{r+3}\nv_add_f32 v{r}, v{r}, v{r+1}")
    A("buffer_atomic_add_f32 v8, v5, s[48:51], s64 offen")
    A("buffer_atomic_add_f32 v16, v5, s[48:51], s64 offen offset:2048")
    A("v_cmp_gt_u32 vcc, 256, v0\ns_and_saveexec_b64 s[66:67], vcc\ns_cbranch_execz L_endA2")
    A("s_add_u32 s64, s64, 4096\ns_nop 3")
    A("buffer_atomic_add_f32 v24, v5, s[48:51], s64 offen")
    A.label("L_endA2")
    A("s_mov_b64 exec, -1")
    stamp(A)
    if FUSED:
        import gen_mlp
        gen_mlp.gen_mlp_fused(A)
    stamp_dump(A, WS_DBG + 0x200000)
    A.label("L_endA")
    A("s_endpgm")


def layernorm10(A, x, t):
    s, u, m, vv, r = t, t + 1, t + 2, t + 3, t + 4
    A(f"v_add_f32 v{s}, v{x}, v{x+1}")
    for e in range(2, 10):
        A(f"v_add_f32 v{s}, v{s}, v{x+e}")
    wave_reduce(A, "add", s, u)
    A(f"v_mul_f32 v{m}, {INV640:#x}, v{s}")
    A(f"v_sub_f32 v{u}, v{x}, v{m}\nv_mul_f32 v{s}, v{u}, v{u}")
    for e in range(1, 10):
        A(f"v_sub_f32 v{u}, v{x+e}, v{m}\nv_fmac_f32 v{s}, v{u}, v{u}")
    wave_reduce(A, "add", s, u)
    A(f"v_mul_f32 v{vv}, {INV640:#x}, v{s}")
    rne(A, m)
    rne(A, vv)
    A(f"v_add_f32 v{vv}, {EPS:#x}, v{vv}")
    rne(A, vv)
    A(f"v_sqrt_f32 v{vv}, v{vv}\ns_nop 0")
    rne(A, vv)
    A(f"v_rcp_f32 v{r}, v{vv}\ns_nop 0")
    for e in range(10):
        A(f"v_sub_f32 v{x+e}, v{x+e}, v{m}")
        rne(A, x + e)
        A(f"v_mul_f32 v{s}, v{x+e}, v{r}")
        A(f"v_fma_f32 v{u}, -v{s}, v{vv}, v{x+e}")
        A(f"v_fma_f32 v{x+e}, v{u}, v{r}, v{s}")
        rne(A, x + e)


def cross_wave_reduce_192(A, kind, mid=None):
    A("v_lshrrev_b32 v5, 5, v1\ns_lshl_b32 s64, s59, 1\nv_add_u32 v5, s64, v5\nv_mul_u32_u24 v5, 768, v5")
    A("v_and_b32 v6, 31, v1\nv_mul_u32_u24 v6, 24, v6\nv_add_u32 v5, v5, v6")
    QR = L_QR if kind == "q" else L_OQR
    for tau in range(2):
        for e in range(3):
            A(f"ds_write_b64 v5, v[{14+6*tau+2*e}:{15+6*tau+2*e}] offset:{QR + tau*12288 + e*8}")
    if mid is not None:
        mid(A)
    A("s_waitcnt lgkmcnt(0)\ns_barrier")
    A("v_cmp_gt_u32 vcc, 384, v0\ns_and_saveexec_b64 s[64:65], vcc")
    A(f"s_cbranch_execz L_cw_{kind}")
    A("v_cmp_le_u32 vcc, 192, v0\nv_mov_b32 v6, 0\nv_mov_b32 v5, 11520\ns_nop 0\nv_cndmask_b32 v6, v6, v5, vcc")
    A("v_lshlrev_b32 v5, 2, v0\nv_add_u32 v5, v5, v6")
    T = 112 if kind == "q" else 92
    for s in range(16):
        A(f"ds_read_b32 v{T+s}, v5 offset:{QR + s*768}")
    A("s_waitcnt lgkmcnt(0)")
    for s in range(8):
        A(f"v_add_f32 v{T+s}, v{T+s}, v{T+8+s}")
    for s in range(4):
        A(f"v_add_f32 v{T+s}, v{T+s}, v{T+4+s}")
    A(f"v_add_f32 v{T}, v{T}, v{T+2}\nv_add_f32 v{T+1}, v{T+1}, v{T+3}\nv_add_f32 v{T}, v{T}, v{T+1}")
    if kind == "q":
        A(f"v_cvt_pk_bf16_f32 v{T}, v{T}, v{T}\nv_lshlrev_b32 v5, 1, v0")
        A(f"ds_write_b16 v5, v{T} offset:{L_QB}")
    else:
        A(f"v_lshlrev_b32 v5, 3, v0\nv_mov_b32 v6, 0\nv_mov_b32 v{T+1}, 1532\nv_cndmask_b32 v6, v6, v{T+1}, vcc\nv_sub_u32 v5, v5, v6")
        A(f"ds_write_b32 v5, v{T} offset:{L_OV}")
    A.label(f"L_cw_{kind}")
    A("s_mov_b64 exec, -1")
    A("s_waitcnt lgkmcnt(0)\ns_barrier")


def kd(name, vgpr, sgpr=100):
    return f""".amdhsa_kernel {name}
  .amdhsa_next_free_vgpr {vgpr}
  .amdhsa_next_free_sgpr {sgpr}
  .amdhsa_accum_offset {vgpr}
  .amdhsa_group_segment_fixed_size 0
  .amdhsa_kernarg_size 104
  .amdhsa_user_sgpr_count 2
  .amdhsa_user_sgpr_kernarg_segment_ptr 1
  .amdhsa_system_sgpr_workgroup_id_x 1
.end_amdhsa_kernel
"""


HEADER = """; Kernarg layout for this problem (104 bytes, ptrs only, base s[0:1]):
;   offset  88: d_debug   256 bytes
"""


def main():
    global DEBUG, TIMING
    out = sys.argv[1] if len(sys.argv) > 1 else f"cdna_kernels/{NAME}.s"
    DEBUG = len(sys.argv) > 2 and sys.argv[2] == "debug"
    TIMING = len(sys.argv) > 2 and sys.argv[2] == "timing"
    only_a = len(sys.argv) > 3 and sys.argv[3] == "A"
    A = Asm()
    A.raw(HEADER.rstrip())
    import gen_mlp
    only_a = only_a or FUSED
    A.raw(f"; @launch kernel=attn_kernel grid=(256,1,1) block=(512,1,1) lds={max(L_END_A, gen_mlp.F_END) if FUSED else L_END_A}")
    if not only_a:
        A.raw(gen_mlp.launch_line())
    A.raw('.amdgcn_target "amdgcn-amd-amdhsa--gfx950"\n.text')
    gen_attn(A)
    if not only_a:
        gen_mlp.gen_mlp(A, DEBUG)
    A.raw('.section .rodata,"a"\n.p2align 6')
    A.raw(kd("attn_kernel", 256))
    if not only_a:
        A.raw(".p2align 6")
        A.raw(gen_mlp.kd())
    open(out, "w").write(A.text())


if __name__ == "__main__":
    import gen as _g
    _g.main()
```
